```python
import torch

def _softmax(x, axis=-1):
    return torch.softmax(x, dim=axis)
def _gelu(x):
    return torch.nn.functional.gelu(x, approximate="tanh")
def _silu(x):
    return torch.nn.functional.silu(x)
def _sigmoid(x):
    return torch.sigmoid(x)
def _layernorm(x, axis=-1, eps=1e-5):
    m = x.mean(dim=axis, keepdim=True)
    v = x.var(dim=axis, keepdim=True, unbiased=False)
    return (x - m) / torch.sqrt(v + eps)
def _scatter_add(tgt, idx, src, axis=0):
    return tgt.clone().index_add_(axis, idx, src)
def _segment_sum(src, seg, n):
    out = torch.zeros((n,) + src.shape[1:], dtype=src.dtype)
    return out.index_add_(0, seg, src)
def _pad(x, pw):
    flat = tuple(v for pair in reversed(pw) for v in pair)
    return torch.nn.functional.pad(x, flat)

kernel_name = 'parallel_sum__spectral_gfnet__glu_gated_geglu__prompt'

def setup_inputs():

    _w = (lambda a: (lambda t: t.to(torch.bfloat16) if t.is_floating_point() else t)(torch.as_tensor(a)))
    def _A_setup():
        B, S, D = 1, 2048, 448
        Df = D // 2 + 1
        return {
            "x": _w((lambda *s: torch.randn(*s, dtype=torch.bfloat16) * 0.05)(B, S, D)),
            "w_r": _w((lambda *s: torch.randn(*s, dtype=torch.bfloat16) * 0.8)(S, Df) * 0.02),
            "w_i": _w((lambda *s: torch.randn(*s, dtype=torch.bfloat16) * 0.8)(S, Df) * 0.02),
        }
    _A_in = _A_setup()

    def _B_setup():
        B, S, Dm, Df = 1, 2048, 448, 1792
        return {
            "x": _w((lambda *s: torch.randn(*s, dtype=torch.bfloat16) * 0.05)(B, S, Dm)),
            "w_gate": _w((lambda *s: torch.randn(*s, dtype=torch.bfloat16) * 0.4)(Dm, Df) * (Dm ** -0.5)),
            "w_up": _w((lambda *s: torch.randn(*s, dtype=torch.bfloat16) * 0.4)(Dm, Df) * (Dm ** -0.5)),
            "w_down": _w((lambda *s: torch.randn(*s, dtype=torch.bfloat16) * 0.4)(Df, Dm) * (Df ** -0.5)),
        }
    _B_in = _B_setup()

    return {
        "A_x": _A_in["x"],
        "A_w_r": _A_in["w_r"],
        "A_w_i": _A_in["w_i"],
        "B_x": _B_in["x"],
        "B_w_gate": _B_in["w_gate"],
        "B_w_up": _B_in["w_up"],
        "B_w_down": _B_in["w_down"],
    }

def reference(A_x, A_w_r, A_w_i, B_x, B_w_gate, B_w_up, B_w_down):
    def _A_ref(x, w_r, w_i):
        B, S, D = x.shape
        X = (lambda x, axes=(-2,-1): torch.fft.rfft2(x.float(), dim=axes))(x, axes=(-2, -1))
        W = w_r + 1j * w_i
        X = X * W
        y = (lambda x, s, axes=(-2,-1): torch.fft.irfft2(x, s=s, dim=axes).to(torch.bfloat16))(X, (S, D), axes=(-2, -1))
        return y

    def _B_ref(x, w_gate, w_up, w_down):
        g = torch.einsum("bsd,df->bsf", x, w_gate)
        u = torch.einsum("bsd,df->bsf", x, w_up)
        h = _gelu(g) * u
        return torch.einsum("bsf,fd->bsd", h, w_down)

    x = A_x
    xn = _layernorm(x, axis=-1)
    return x + _A_ref(xn, A_w_r, A_w_i) + _B_ref(xn, B_w_gate, B_w_up, B_w_down)
```

```python
import struct, math

def f32bits(x):
    return struct.unpack('<I', struct.pack('<f', x))[0]

class Asm:
    def __init__(self):
        self.lines = []
    def __call__(self, s):
        for ln in s.strip('\n').split('\n'):
            ln = ln.strip()
            if ln:
                self.lines.append('    ' + ln)
    def label(self, l):
        self.lines.append(l + ':')
    def c(self, s):
        self.lines.append('    ; ' + s)
    def nop(self, n):
        while n > 0:
            k = min(n, 16)
            self.lines.append('    s_nop %d' % (k - 1))
            n -= k
    def text(self):
        return '\n'.join(self.lines) + '\n'

    def srd(self, d, base_lo, base_hi, nbytes, off=0):
        if off:
            self('s_add_u32 s%d, s%d, 0x%x' % (d, base_lo, off))
            self('s_addc_u32 s%d, s%d, 0' % (d + 1, base_hi))
        else:
            self('s_mov_b32 s%d, s%d' % (d, base_lo))
            self('s_mov_b32 s%d, s%d' % (d + 1, base_hi))
        self('s_mov_b32 s%d, 0x%x' % (d + 2, nbytes))
        self('s_mov_b32 s%d, 0x00020000' % (d + 3))

def vr(a, n):
    return 'v[%d:%d]' % (a, a + n - 1)

def kernel_header(name):
    return '.globl %s\n.p2align 8\n.type %s,@function\n%s:\n' % (name, name, name)

def kernel_desc(name, vgpr, sgpr=102):
    acc = (vgpr + 3) // 4 * 4
    return ('.amdhsa_kernel %s\n'
            '  .amdhsa_next_free_vgpr %d\n'
            '  .amdhsa_next_free_sgpr %d\n'
            '  .amdhsa_accum_offset %d\n'
            '  .amdhsa_group_segment_fixed_size 0\n'
            '  .amdhsa_kernarg_size 80\n'
            '  .amdhsa_user_sgpr_count 2\n'
            '  .amdhsa_user_sgpr_kernarg_segment_ptr 1\n'
            '  .amdhsa_system_sgpr_workgroup_id_x 1\n'
            '.end_amdhsa_kernel\n') % (name, vgpr, sgpr, acc)
```

```python
from asmlib import *

XN_OFF = 0
ZT_OFF = 2 << 20
YT_OFF = 4 << 20
G_OFF = 6 << 20
H_OFF = 8 << 20
XN_BYTES = 2048 * 448 * 2
ZT_BYTES = 256 * 2 * 2048 * 2
YT_BYTES = 225 * 2 * 2048 * 2
G_ROWS = 480
G_BYTES = G_ROWS * 896
H_BYTES = 2048 * 1792 * 2

def load_ptrs(a):
    a('s_load_dwordx16 s[16:31], s[0:1], 0')
    a('s_load_dwordx4 s[32:35], s[0:1], 64')

def mod448(a, p, t1, out):
    a('v_lshrrev_b32 v%d, 6, v%d' % (t1, p))
    a('v_mul_u32_u24 v%d, 9363, v%d' % (t1, t1))
    a('v_lshrrev_b32 v%d, 16, v%d' % (t1, t1))
    a('v_mul_u32_u24 v%d, 448, v%d' % (t1, t1))
    a('v_sub_u32 v%d, v%d, v%d' % (out, p, t1))

def gen_k0():
    a = Asm()
    PITCH = 928
    a('s_cmp_ge_u32 s2, 256')
    a('s_cbranch_scc1 L_k0_end')
    load_ptrs(a)
    a('s_lshr_b32 s3, s2, 2')
    a('s_and_b32 s4, s2, 3')
    a('v_lshrrev_b32 v1, 3, v0')
    a('v_and_b32 v2, 7, v0')
    a('v_mul_u32_u24 v3, 896, v1')
    a('v_lshl_add_u32 v3, v2, 4, v3')
    a('s_mul_i32 s5, s3, 28672')
    a('s_waitcnt lgkmcnt(0)')
    a.srd(36, 16, 17, XN_BYTES)
    a.srd(40, 34, 35, XN_BYTES, XN_OFF)
    a.srd(44, 34, 35, ZT_BYTES, ZT_OFF)
    a.srd(48, 34, 35, G_BYTES, G_OFF)
    for i in range(7):
        a('buffer_load_dwordx4 %s, v3, s[36:39], s5 offen offset:%d' % (vr(8 + 4 * i, 4), 128 * i))
    a('v_and_b32 v4, 15, v0')
    a('v_lshrrev_b32 v5, 6, v0')
    a('v_lshl_add_u32 v4, v5, 4, v4')
    a('s_lshl_b32 s6, s4, 6')
    a('v_add_u32 v4, s6, v4')
    a('v_bfe_u32 v5, v0, 4, 2')
    a('v_lshlrev_b32 v5, 3, v5')
    inv448 = f32bits(1.0 / 448.0)
    a('s_mov_b32 s7, 0x%x' % inv448)
    a('v_cvt_f32_u32 v6, v4')
    a('v_mul_f32 v6, s7, v6')
    a('v_sin_f32 v7, v6')
    a('v_cos_f32 v6, v6')
    BF = 100
    C0, S0 = 44, 52
    for t in range(14):
        a('v_add_u32 v40, %d, v5' % (32 * t))
        a('v_mul_u32_u24 v41, v40, v4')
        mod448(a, 41, 42, 43)
        a('v_cvt_f32_u32 v43, v43')
        a('v_mul_f32 v43, s7, v43')
        a('v_cos_f32 v%d, v43' % C0)
        a('v_sin_f32 v%d, v43' % S0)
        a.nop(1)
        for j in range(7):
            a('v_mul_f32 v40, v%d, v7' % (S0 + j))
            a('v_mul_f32 v41, v%d, v7' % (C0 + j))
            a('v_fma_f32 v%d, v%d, v6, -v40' % (C0 + j + 1, C0 + j))
            a('v_fma_f32 v%d, v%d, v6, v41' % (S0 + j + 1, S0 + j))
        for q in range(4):
            a('v_cvt_pk_bf16_f32 v%d, v%d, v%d' % (BF + 8 * t + q, C0 + 2 * q, C0 + 2 * q + 1))
            a('v_cvt_pk_bf16_f32 v%d, -v%d, -v%d' % (BF + 8 * t + 4 + q, S0 + 2 * q, S0 + 2 * q + 1))
    a('s_cmp_ge_u32 s2, 240')
    a('s_cbranch_scc1 L_k0_nog')
    a('s_mov_b32 s8, 0x%x' % f32bits(2.0 / 448.0))
    a('s_cmp_eq_u32 s2, 0')
    a('s_cselect_b32 s8, 0x%x, s8' % inv448)
    a('s_cmp_eq_u32 s2, 224')
    a('s_cselect_b32 s8, 0x%x, s8' % inv448)
    a('s_cmp_gt_u32 s2, 224')
    a('s_cselect_b32 s8, 0, s8')
    a('v_cmp_gt_u32 vcc, 224, v0')
    a('s_and_saveexec_b64 s[10:11], vcc')
    a('s_cbranch_execz L_k0_g_restore')
    a('v_cmp_le_u32 vcc, 112, v0')
    a.nop(2)
    a('v_cndmask_b32 v40, 0, 1, vcc')
    a('v_mul_u32_u24 v41, 112, v40')
    a('v_sub_u32 v41, v0, v41')
    a('v_cvt_f32_u32 v42, v40')
    a('v_mul_f32 v42, 0.25, v42')
    a('v_lshlrev_b32 v43, 2, v41')
    for e in range(4):
        a('v_add_u32 v44, %d, v43' % e)
        a('v_mul_u32_u24 v44, s2, v44')
        mod448(a, 44, 45, 46)
        a('v_cvt_f32_u32 v46, v46')
        a('v_fma_f32 v46, v46, s7, v42')
        a('v_cos_f32 v%d, v46' % (48 + e))
        a.nop(1)
        a('v_mul_f32 v%d, s8, v%d' % (48 + e, 48 + e))
    a('v_cvt_pk_bf16_f32 v52, v48, v49')
    a('v_cvt_pk_bf16_f32 v53, v50, v51')
    a('s_lshl_b32 s9, s2, 1')
    a('v_add_u32 v44, s9, v40')
    a('v_mul_u32_u24 v44, 896, v44')
    a('v_lshl_add_u32 v44, v41, 3, v44')
    a('buffer_store_dwordx2 v[52:53], v44, s[48:51], 0 offen')
    a.label('L_k0_g_restore')
    a('s_mov_b64 exec, s[10:11]')
    a.label('L_k0_nog')
    F0 = 40
    a('s_waitcnt vmcnt(0)')
    for i in range(28):
        a('v_lshlrev_b32 v%d, 16, v%d' % (F0 + 2 * i, 8 + i))
        a('v_and_b32 v%d, 0xffff0000, v%d' % (F0 + 2 * i + 1, 8 + i))
    for k in range(4):
        a('v_add_f32 v%d, v%d, v%d' % (96 + k, F0 + k, F0 + 4 + k))
    for i in range(8, 56):
        a('v_add_f32 v%d, v%d, v%d' % (96 + (i & 3), 96 + (i & 3), F0 + i))
    a('v_add_f32 v96, v96, v97')
    a('v_add_f32 v98, v98, v99')
    a('v_add_f32 v96, v96, v98')
    def red8(r):
        a.nop(2)
        a('v_add_f32_dpp v%d, v%d, v%d quad_perm:[1,0,3,2] row_mask:0xf bank_mask:0xf' % (r, r, r))
        a.nop(2)
        a('v_add_f32_dpp v%d, v%d, v%d quad_perm:[2,3,0,1] row_mask:0xf bank_mask:0xf' % (r, r, r))
        a.nop(2)
        a('v_add_f32_dpp v%d, v%d, v%d row_half_mirror row_mask:0xf bank_mask:0xf' % (r, r, r))
    red8(96)
    a('v_mul_f32 v97, s7, v96')
    a('v_mov_b32 v96, 0')
    a('v_mov_b32 v98, 0')
    for i in range(56):
        acc = 96 if (i & 1) == 0 else 98
        a('v_sub_f32 v99, v%d, v97' % (F0 + i))
        a('v_fmac_f32 v%d, v99, v99' % acc)
    a('v_add_f32 v96, v96, v98')
    red8(96)
    a('v_mul_f32 v96, s7, v96')
    a('v_cvt_pk_bf16_f32 v98, v97, v96')
    a('v_lshlrev_b32 v97, 16, v98')
    a('v_and_b32 v96, 0xffff0000, v98')
    a('v_add_f32 v96, 0x%x, v96' % f32bits(1e-5))
    a('v_cvt_pk_bf16_f32 v96, v96, v96')
    a('v_lshlrev_b32 v96, 16, v96')
    a('v_sqrt_f32 v96, v96')
    a.nop(1)
    a('v_cvt_pk_bf16_f32 v96, v96, v96')
    a('v_lshlrev_b32 v96, 16, v96')
    a('v_rcp_f32 v96, v96')
    a.nop(1)
    for i in range(28):
        x0, x1 = F0 + 2 * i, F0 + 2 * i + 1
        a('v_sub_f32 v%d, v%d, v97' % (x0, x0))
        a('v_sub_f32 v%d, v%d, v97' % (x1, x1))
        a('v_cvt_pk_bf16_f32 v99, v%d, v%d' % (x0, x1))
        a('v_lshlrev_b32 v%d, 16, v99' % x0)
        a('v_and_b32 v%d, 0xffff0000, v99' % x1)
        a('v_mul_f32 v%d, v%d, v96' % (x0, x0))
        a('v_mul_f32 v%d, v%d, v96' % (x1, x1))
        a('v_cvt_pk_bf16_f32 v%d, v%d, v%d' % (8 + i, x0, x1))
    a('v_mul_u32_u24 v98, %d, v1' % PITCH)
    a('v_lshl_add_u32 v98, v2, 4, v98')
    for i in range(7):
        a('ds_write_b128 v98, %s offset:%d' % (vr(8 + 4 * i, 4), 128 * i))
    a('s_cmp_lg_u32 s4, 0')
    a('s_cbranch_scc1 L_k0_noxn')
    for i in range(7):
        a('buffer_store_dwordx4 %s, v3, s[40:43], s5 offen offset:%d' % (vr(8 + 4 * i, 4), 128 * i))
    a.label('L_k0_noxn')
    ACC = 60
    for i in range(16):
        a('v_mov_b32 v%d, 0' % (ACC + i))
    a('v_and_b32 v84, 15, v0')
    a('v_lshrrev_b32 v85, 2, v84')
    a('v_and_b32 v84, 3, v84')
    a('v_lshl_add_u32 v84, v85, 3, v84')
    a('v_mul_u32_u24 v84, %d, v84' % PITCH)
    a('v_lshl_add_u32 v84, v5, 1, v84')
    a('s_waitcnt lgkmcnt(0)')
    a('s_barrier')
    AF = [76, 88]
    AF = [76, 40]
    def rd(t, buf):
        a('ds_read_b128 %s, v84 offset:%d' % (vr(buf, 4), 64 * t))
        a('ds_read_b128 %s, v84 offset:%d' % (vr(buf + 4, 4), 64 * t + 4 * PITCH))
    rd(0, AF[0])
    for t in range(14):
        cur = AF[t & 1]
        if t + 1 < 14:
            rd(t + 1, AF[(t + 1) & 1])
            a('s_waitcnt lgkmcnt(2)')
        else:
            a('s_waitcnt lgkmcnt(0)')
        for mt in range(2):
            for c in range(2):
                d = ACC + 8 * mt + 4 * c
                a('v_mfma_f32_16x16x32_bf16 %s, %s, %s, %s' % (vr(d, 4), vr(cur + 4 * mt, 4), vr(BF + 8 * t + 4 * c, 4), vr(d, 4)))
    a.nop(10)
    a('v_lshlrev_b32 v85, 13, v4')
    a('v_lshl_add_u32 v85, v5, 1, v85')
    a('v_add_u32 v86, 4096, v85')
    a('s_lshl_b32 s6, s3, 6')
    for c in range(2):
        o = 88 + 4 * c
        for mt in range(2):
            d = ACC + 8 * mt + 4 * c
            a('v_cvt_pk_bf16_f32 v%d, v%d, v%d' % (o + 2 * mt, d, d + 1))
            a('v_cvt_pk_bf16_f32 v%d, v%d, v%d' % (o + 2 * mt + 1, d + 2, d + 3))
        a('buffer_store_dwordx4 %s, v%d, s[44:47], s6 offen' % (vr(o, 4), 85 + c))
    a.label('L_k0_end')
    a('s_endpgm')
    return a.text(), 212, 32 * PITCH
```

```python
from asmlib import *
from k0 import *

def gen_k1():
    a = Asm()
    a('s_cmp_ge_u32 s2, 224')
    a('s_cbranch_scc1 L_k1_end')
    load_ptrs(a)
    a('v_lshrrev_b32 v1, 6, v0')
    a('v_and_b32 v2, 63, v0')
    a('v_readfirstlane_b32 s3, v1')
    a('s_and_b32 s4, s2, 7')
    a('s_lshr_b32 s5, s2, 3')
    a('v_and_b32 v3, 31, v2')
    a('v_lshl_add_u32 v3, v1, 5, v3')
    a('v_lshrrev_b32 v4, 5, v2')
    a('v_mul_u32_u24 v5, 896, v3')
    a('v_lshl_add_u32 v5, v4, 4, v5')
    a('s_mul_i32 s6, s4, 229376')
    a('v_lshrrev_b32 v6, 3, v2')
    a('v_lshl_add_u32 v6, v1, 3, v6')
    a('v_mul_u32_u24 v6, 3584, v6')
    a('v_and_b32 v7, 7, v2')
    a('v_bfe_u32 v8, v2, 4, 1')
    a('v_lshlrev_b32 v8, 2, v8')
    a('v_xor_b32 v7, v7, v8')
    a('v_lshl_add_u32 v6, v7, 4, v6')
    a('s_lshl_b32 s7, s5, 7')
    a('s_lshl_b32 s8, s3, 10')
    a('s_waitcnt lgkmcnt(0)')
    a.srd(36, 34, 35, XN_BYTES, XN_OFF)
    a.srd(40, 24, 25, 448 * 3584)
    a.srd(44, 26, 27, 448 * 3584)
    a.srd(48, 34, 35, H_BYTES, H_OFF)
    XF = 64
    UPOFF = 57344
    for c in range(7):
        for ks in range(4 * c, 4 * c + 4):
            a('buffer_load_dwordx4 %s, v5, s[36:39], s6 offen offset:%d' % (vr(XF + 4 * ks, 4), 32 * ks))
        a('s_add_u32 s9, s7, %d' % (c * 229376))
        a('s_add_u32 s10, s8, %d' % (c * 8192))
        a('s_mov_b32 m0, s10')
        a('s_add_u32 s10, s10, %d' % UPOFF)
        a('buffer_load_dwordx4 v6, s[40:43], s9 offen lds')
        a('s_mov_b32 m0, s10')
        a.nop(1)
        a('buffer_load_dwordx4 v6, s[44:47], s9 offen lds')
    a('v_lshrrev_b32 v8, 4, v2')
    a('v_and_b32 v9, 15, v2')
    a('v_lshrrev_b32 v10, 2, v9')
    a('v_and_b32 v11, 3, v9')
    a('v_lshrrev_b32 v12, 1, v8')
    a('v_lshl_add_u32 v12, v12, 3, v10')
    a('v_lshlrev_b32 v12, 7, v12')
    a('v_and_b32 v13, 1, v11')
    a('v_lshlrev_b32 v13, 1, v13')
    a('v_and_b32 v14, 1, v8')
    a('v_add_u32 v13, v13, v14')
    a('v_lshrrev_b32 v14, 1, v10')
    a('v_lshl_add_u32 v13, v14, 2, v13')
    a('v_lshl_add_u32 v12, v13, 4, v12')
    a('v_lshrrev_b32 v14, 1, v11')
    a('v_lshl_add_u32 v16, v14, 3, v12')
    a('v_xor_b32 v17, 64, v16')
    a('v_add_u32 v18, %d, v16' % UPOFF)
    a('v_add_u32 v19, %d, v17' % UPOFF)
    VB = [16, 17, 18, 19]
    WF = [32, 48]
    ACC = 176
    for i in range(64):
        a('v_mov_b32 v%d, 0' % (ACC + i))
    def rd(ks, buf):
        for u in range(4):
            for h in range(2):
                a('ds_read_b64_tr_b16 %s, v%d offset:%d' % (vr(buf + 4 * u + 2 * h, 2), VB[u], ks * 2048 + h * 512))
    for c in range(7):
        a('s_waitcnt vmcnt(%d)' % (6 * (6 - c)))
        a('s_barrier')
        rd(4 * c, WF[0])
        for kk in range(4):
            ks = 4 * c + kk
            cur = WF[kk & 1]
            if kk < 3:
                rd(ks + 1, WF[(kk + 1) & 1])
                a('s_waitcnt lgkmcnt(8)')
            else:
                a('s_waitcnt lgkmcnt(0)')
            for u in range(4):
                d = ACC + 16 * u
                a('v_mfma_f32_32x32x16_bf16 %s, %s, %s, %s' % (vr(d, 16), vr(cur + 4 * u, 4), vr(XF + 4 * ks, 4), vr(d, 16)))
    a.nop(14)
    a('s_mov_b32 s12, 0x%x' % f32bits(0.044715))
    a('s_mov_b32 s13, 0x%x' % f32bits(-2.0 * 0.7978845608028654 * 1.4426950408889634))
    a('v_mul_u32_u24 v5, 3584, v3')
    a('v_lshl_add_u32 v5, v4, 5, v5')
    a('s_mul_i32 s14, s4, %d' % (256 * 3584))
    a('s_add_u32 s14, s14, s7')
    T = 32
    OUT = 64
    for v in range(2):
        for p in range(8):
            g0, g1 = ACC + 16 * v + 2 * p, ACC + 16 * v + 2 * p + 1
            u0, u1 = g0 + 32, g1 + 32
            a('v_cvt_pk_bf16_f32 v%d, v%d, v%d' % (T, g0, g1))
            a('v_cvt_pk_bf16_f32 v%d, v%d, v%d' % (T + 1, u0, u1))
            a('v_lshlrev_b32 v%d, 16, v%d' % (g0, T))
            a('v_and_b32 v%d, 0xffff0000, v%d' % (g1, T))
            a('v_lshlrev_b32 v%d, 16, v%d' % (u0, T + 1))
            a('v_and_b32 v%d, 0xffff0000, v%d' % (u1, T + 1))
            for k, g in enumerate((g0, g1)):
                a('v_mul_f32 v%d, v%d, v%d' % (T + 2 + k, g, g))
            for k, g in enumerate((g0, g1)):
                a('v_fma_f32 v%d, v%d, s12, 1.0' % (T + 2 + k, T + 2 + k))
            for k, g in enumerate((g0, g1)):
                a('v_mul_f32 v%d, v%d, v%d' % (T + 2 + k, T + 2 + k, g))
            for k, g in enumerate((g0, g1)):
                a('v_mul_f32 v%d, s13, v%d' % (T + 2 + k, T + 2 + k))
            for k, g in enumerate((g0, g1)):
                a('v_exp_f32 v%d, v%d' % (T + 2 + k, T + 2 + k))
            a.nop(1)
            for k, g in enumerate((g0, g1)):
                a('v_add_f32 v%d, 1.0, v%d' % (T + 2 + k, T + 2 + k))
            for k, g in enumerate((g0, g1)):
                a('v_rcp_f32 v%d, v%d' % (T + 2 + k, T + 2 + k))
            a.nop(1)
            for k, g in enumerate((g0, g1)):
                a('v_mul_f32 v%d, v%d, v%d' % (T + 2 + k, T + 2 + k, g))
            a('v_cvt_pk_bf16_f32 v%d, v%d, v%d' % (T, T + 2, T + 3))
            a('v_lshlrev_b32 v%d, 16, v%d' % (T + 2, T))
            a('v_and_b32 v%d, 0xffff0000, v%d' % (T + 3, T))
            a('v_mul_f32 v%d, v%d, v%d' % (T + 2, T + 2, u0))
            a('v_mul_f32 v%d, v%d, v%d' % (T + 3, T + 3, u1))
            a('v_cvt_pk_bf16_f32 v%d, v%d, v%d' % (OUT + 8 * v + p, T + 2, T + 3))
        for hh in range(2):
            a('buffer_store_dwordx4 %s, v5, s[48:51], s14 offen offset:%d' % (vr(OUT + 8 * v + 4 * hh, 4), 64 * v + 16 * hh))
    a.label('L_k1_end')
    a('s_endpgm')
    return a.text(), 240, 2 * 57344
```

```python
from asmlib import *
from k0 import *

def cs(a, dc, ds, idx, sc, tmp):
    a('v_cvt_f32_u32 v%d, v%d' % (tmp, idx))
    a('v_mul_f32 v%d, s%d, v%d' % (tmp, sc, tmp))
    a('v_cos_f32 v%d, v%d' % (dc, tmp))
    a('v_sin_f32 v%d, v%d' % (ds, tmp))

def gen_k2():
    a = Asm()
    a('s_cmp_ge_u32 s2, 225')
    a('s_cbranch_scc1 L_k2_end')
    load_ptrs(a)
    a('v_lshrrev_b32 v1, 6, v0')
    a('v_and_b32 v6, 15, v0')
    a('v_readfirstlane_b32 s3, v1')
    a('v_lshl_add_u32 v4, v1, 4, v6')
    a('v_bfe_u32 v5, v0, 4, 2')
    a('v_lshlrev_b32 v2, 4, v0')
    a('s_lshl_b32 s4, s2, 13')
    a('s_add_u32 s5, s4, 4096')
    a('s_lshl_b32 s6, s3, 10')
    a('s_waitcnt lgkmcnt(0)')
    a.srd(36, 34, 35, ZT_BYTES, ZT_OFF)
    a.srd(40, 34, 35, YT_BYTES, YT_OFF)
    a.srd(44, 18, 19, 2048 * 225 * 2)
    a.srd(48, 20, 21, 2048 * 225 * 2)
    a('s_mov_b32 m0, s6')
    a('s_add_u32 s7, s6, 4096')
    a('buffer_load_dwordx4 v2, s[36:39], s4 offen lds')
    a('s_mov_b32 m0, s7')
    a.nop(1)
    a('buffer_load_dwordx4 v2, s[36:39], s5 offen lds')
    a('v_lshl_add_u32 v3, v5, 8, v4')
    a('v_mul_u32_u24 v3, 450, v3')
    a('s_lshl_b32 s8, s2, 1')
    WR, WI = 80, 88
    for mt in range(2):
        for r in range(4):
            i = 4 * mt + r
            a('s_add_u32 s9, s8, %d' % (28800 * (16 * mt + r)))
            a('buffer_load_ushort v%d, v3, s[44:47], s9 offen' % (WR + i))
            a('buffer_load_ushort v%d, v3, s[48:51], s9 offen' % (WI + i))
    a('s_mov_b32 s10, 0x%x' % f32bits(1.0 / 64))
    a('s_mov_b32 s11, 0x%x' % f32bits(1.0 / 32))
    a('s_mov_b32 s12, 0x%x' % f32bits(1.0 / 2048))
    C1, S1, NS1 = 16, 24, 32
    C2, S2, NS2 = 40, 48, 56
    TWC, TWS = 64, 72
    T0 = 152
    a('v_lshlrev_b32 v7, 3, v5')
    for ks in range(2):
        for j in range(8):
            a('v_add_u32 v%d, %d, v7' % (T0, 32 * ks + j))
            a('v_mul_u32_u24 v%d, v%d, v4' % (T0, T0))
            a('v_and_b32 v%d, 63, v%d' % (T0, T0))
            cs(a, T0 + 2 + j, T0 + 10 + j, T0, 10, T0 + 1)
        a.nop(1)
        for q in range(4):
            a('v_cvt_pk_bf16_f32 v%d, v%d, v%d' % (C1 + 4 * ks + q, T0 + 2 + 2 * q, T0 + 3 + 2 * q))
            a('v_cvt_pk_bf16_f32 v%d, v%d, v%d' % (S1 + 4 * ks + q, T0 + 10 + 2 * q, T0 + 11 + 2 * q))
            a('v_cvt_pk_bf16_f32 v%d, -v%d, -v%d' % (NS1 + 4 * ks + q, T0 + 10 + 2 * q, T0 + 11 + 2 * q))
    a('v_lshlrev_b32 v7, 2, v5')
    for mt in range(2):
        a('v_add_u32 v8, %d, v6' % (16 * mt))
        for j in range(8):
            off = j if j < 4 else 16 + j - 4
            a('v_add_u32 v%d, %d, v7' % (T0, off))
            a('v_mul_u32_u24 v%d, v%d, v8' % (T0, T0))
            a('v_and_b32 v%d, 31, v%d' % (T0, T0))
            cs(a, T0 + 2 + j, T0 + 10 + j, T0, 11, T0 + 1)
        a.nop(1)
        for q in range(4):
            a('v_cvt_pk_bf16_f32 v%d, v%d, v%d' % (C2 + 4 * mt + q, T0 + 2 + 2 * q, T0 + 3 + 2 * q))
            a('v_cvt_pk_bf16_f32 v%d, v%d, v%d' % (S2 + 4 * mt + q, T0 + 10 + 2 * q, T0 + 11 + 2 * q))
            a('v_cvt_pk_bf16_f32 v%d, -v%d, -v%d' % (NS2 + 4 * mt + q, T0 + 10 + 2 * q, T0 + 11 + 2 * q))
    for mt in range(2):
        for r in range(4):
            i = 4 * mt + r
            a('v_add_u32 v%d, %d, v7' % (T0, 16 * mt + r))
            a('v_mul_u32_u24 v%d, v%d, v4' % (T0, T0))
            cs(a, TWC + i, TWS + i, T0, 12, T0 + 1)
    a('v_lshrrev_b32 v8, 2, v6')
    a('v_and_b32 v9, 3, v6')
    a('v_lshl_add_u32 v8, v5, 3, v8')
    a('v_lshlrev_b32 v8, 6, v8')
    a('v_lshl_add_u32 v10, v9, 3, v8')
    a('v_lshl_add_u32 v11, v9, 4, v8')
    a('v_add_u32 v11, 8192, v11')
    ZR, ZI = 96, 112
    ACC = 128
    def TR(mt): return ACC + 4 * mt
    def TI(mt): return ACC + 8 + 4 * mt
    BR, BI = 144, 148
    def zero_acc():
        for i in range(16):
            a('v_mov_b32 v%d, 0' % (ACC + i))
    zero_acc()
    a('s_waitcnt vmcnt(16)')
    a('s_barrier')
    def read_frags(base, mtstep):
        for pl, Z in ((0, ZR), (1, ZI)):
            for mt in range(2):
                for ks in range(2):
                    for h in range(2):
                        d = Z + 8 * mt + 4 * ks + 2 * h
                        a('ds_read_b64_tr_b16 %s, v%d offset:%d' % (vr(d, 2), base, pl * 4096 + ks * 2048 + h * 256 + mt * mtstep))
        a('s_waitcnt lgkmcnt(0)')
    def mf(d, x, y):
        a('v_mfma_f32_16x16x32_bf16 %s, %s, %s, %s' % (vr(d, 4), vr(x, 4), vr(y, 4), vr(d, 4)))
    read_frags(10, 32)
    for mt in range(2):
        for ks in range(2):
            zr, zi = ZR + 8 * mt + 4 * ks, ZI + 8 * mt + 4 * ks
            mf(TR(mt), zr, C1 + 4 * ks)
            mf(TI(mt), zi, C1 + 4 * ks)
            mf(TR(mt), zi, S1 + 4 * ks)
            mf(TI(mt), zr, NS1 + 4 * ks)
    a.nop(10)
    def twiddle(conj):
        for i in range(8):
            tr_, ti_ = ACC + i, ACC + 8 + i
            a('v_mul_f32 v%d, v%d, v%d' % (T0 + i, tr_, TWC + i))
            a('v_mul_f32 v%d, v%d, v%d' % (T0 + 8 + i, ti_, TWC + i))
            if not conj:
                a('v_fma_f32 v%d, v%d, v%d, v%d' % (T0 + i, ti_, TWS + i, T0 + i))
                a('v_fma_f32 v%d, -v%d, v%d, v%d' % (T0 + 8 + i, tr_, TWS + i, T0 + 8 + i))
            else:
                a('v_fma_f32 v%d, -v%d, v%d, v%d' % (T0 + i, ti_, TWS + i, T0 + i))
                a('v_fma_f32 v%d, v%d, v%d, v%d' % (T0 + 8 + i, tr_, TWS + i, T0 + 8 + i))
    def pack():
        for q in range(4):
            a('v_cvt_pk_bf16_f32 v%d, v%d, v%d' % (BR + q, T0 + 2 * q, T0 + 2 * q + 1))
            a('v_cvt_pk_bf16_f32 v%d, v%d, v%d' % (BI + q, T0 + 8 + 2 * q, T0 + 8 + 2 * q + 1))
    twiddle(False)
    pack()
    zero_acc()
    a.nop(2)
    for mt in range(2):
        mf(TR(mt), C2 + 4 * mt, BR)
        mf(TI(mt), C2 + 4 * mt, BI)
        mf(TR(mt), S2 + 4 * mt, BI)
        mf(TI(mt), NS2 + 4 * mt, BR)
    a('s_waitcnt vmcnt(0)')
    for i in range(8):
        a('v_lshlrev_b32 v%d, 16, v%d' % (WR + i, WR + i))
        a('v_lshlrev_b32 v%d, 16, v%d' % (WI + i, WI + i))
        a('v_mul_f32 v%d, s12, v%d' % (WR + i, WR + i))
        a('v_mul_f32 v%d, s12, v%d' % (WI + i, WI + i))
    a.nop(4)
    for i in range(8):
        xr, xi = ACC + i, ACC + 8 + i
        a('v_mul_f32 v%d, v%d, v%d' % (T0 + i, xr, WR + i))
        a('v_mul_f32 v%d, v%d, v%d' % (T0 + 8 + i, xr, WI + i))
        a('v_fma_f32 v%d, -v%d, v%d, v%d' % (T0 + i, xi, WI + i, T0 + i))
        a('v_fma_f32 v%d, v%d, v%d, v%d' % (T0 + 8 + i, xi, WR + i, T0 + 8 + i))
    pack()
    zero_acc()
    a.nop(2)
    for mt in range(2):
        mf(TR(mt), C2 + 4 * mt, BR)
        mf(TI(mt), C2 + 4 * mt, BI)
        mf(TR(mt), NS2 + 4 * mt, BI)
        mf(TI(mt), S2 + 4 * mt, BR)
    a.nop(10)
    twiddle(True)
    pack()
    a('v_lshlrev_b32 v12, 6, v4')
    a('v_lshl_add_u32 v12, v5, 3, v12')
    for mt in range(2):
        a('ds_write_b64 v12, %s offset:%d' % (vr(BR + 2 * mt, 2), 8192 + 32 * mt))
        a('ds_write_b64 v12, %s offset:%d' % (vr(BI + 2 * mt, 2), 8192 + 4096 + 32 * mt))
    zero_acc()
    a('s_waitcnt lgkmcnt(0)')
    a('s_barrier')
    read_frags(11, 8)
    for mt in range(2):
        for ks in range(2):
            zr, zi = ZR + 8 * mt + 4 * ks, ZI + 8 * mt + 4 * ks
            mf(TR(mt), zr, C1 + 4 * ks)
            mf(TI(mt), zi, C1 + 4 * ks)
            mf(TR(mt), zi, NS1 + 4 * ks)
            mf(TI(mt), zr, S1 + 4 * ks)
    a.nop(10)
    for q in range(4):
        a('v_cvt_pk_bf16_f32 v%d, v%d, v%d' % (BR + q, ACC + 2 * q, ACC + 2 * q + 1))
        a('v_cvt_pk_bf16_f32 v%d, v%d, v%d' % (BI + q, ACC + 8 + 2 * q, ACC + 8 + 2 * q + 1))
    a('v_lshlrev_b32 v12, 6, v4')
    a('v_lshl_add_u32 v12, v5, 4, v12')
    a('buffer_store_dwordx4 %s, v12, s[40:43], s4 offen' % vr(BR, 4))
    a('buffer_store_dwordx4 %s, v12, s[40:43], s5 offen' % vr(BI, 4))
    a.label('L_k2_end')
    a('s_endpgm')
    return a.text(), 176, 16384
```

```python
from asmlib import *
from k0 import *

def gen_k3():
    a = Asm()
    NS = 4
    NH = 28
    NY = 8
    NC = NH + NY
    a('s_cmp_ge_u32 s2, 224')
    a('s_cbranch_scc1 L_k3_end')
    load_ptrs(a)
    a('v_lshrrev_b32 v1, 6, v0')
    a('v_and_b32 v2, 63, v0')
    a('v_readfirstlane_b32 s3, v1')
    a('s_and_b32 s4, s2, 7')
    a('s_lshr_b32 s5, s2, 3')
    a('s_and_b32 s6, s5, 3')
    a('s_lshl_b32 s4, s4, 2')
    a('s_add_u32 s4, s4, s6')
    a('s_lshr_b32 s5, s5, 2')
    a('s_lshr_b32 s6, s3, 1')
    a('s_and_b32 s7, s3, 1')
    a('v_lshrrev_b32 v3, 3, v2')
    a('v_lshl_add_u32 v3, v1, 4, v3')
    a('v_and_b32 v4, 7, v2')
    a('v_bfe_u32 v5, v2, 4, 1')
    a('v_lshlrev_b32 v5, 2, v5')
    a('v_xor_b32 v5, v4, v5')
    a('v_mul_u32_u24 v6, 896, v3')
    a('v_lshl_add_u32 v6, v5, 4, v6')
    a('v_add_u32 v7, 7168, v6')
    a('v_lshlrev_b32 v8, 12, v3')
    a('v_lshl_add_u32 v8, v5, 4, v8')
    a('v_add_u32 v9, 32768, v8')
    a('v_lshrrev_b32 v10, 4, v2')
    a('v_xor_b32 v11, v4, v10')
    a('v_mul_u32_u24 v12, 3584, v3')
    a('v_lshl_add_u32 v10, v11, 4, v12')
    a('v_xor_b32 v11, 4, v11')
    a('v_lshl_add_u32 v11, v11, 4, v12')
    a('v_add_u32 v11, %d, v11' % (8 * 3584))
    a('v_and_b32 v12, 31, v2')
    a('s_lshl_b32 s8, s6, 5')
    a('v_add_u32 v12, s8, v12')
    a('v_lshrrev_b32 v13, 5, v2')
    a('v_mul_u32_u24 v14, 896, v12')
    a('v_lshl_add_u32 v14, v13, 5, v14')
    a('s_lshl_b32 s8, s7, 6')
    a('v_add_u32 v14, s8, v14')
    a('s_mul_i32 s9, s4, %d' % (64 * 896))
    a('s_lshl_b32 s10, s5, 7')
    a('s_add_u32 s9, s9, s10')
    a('s_mul_i32 s11, s4, %d' % (64 * 3584))
    a('s_lshl_b32 s12, s4, 7')
    a('s_lshl_b32 s13, s3, 11')
    a('s_waitcnt lgkmcnt(0)')
    a.srd(36, 16, 17, XN_BYTES)
    a.srd(40, 28, 29, 1792 * 896)
    a.srd(44, 34, 35, H_BYTES, H_OFF)
    a.srd(48, 34, 35, YT_BYTES, YT_OFF)
    a.srd(52, 34, 35, 450 * 896, G_OFF)
    a.srd(56, 30, 31, XN_BYTES)
    XR = 24
    a('buffer_load_dwordx4 %s, v14, s[36:39], s9 offen' % vr(XR, 4))
    a('buffer_load_dwordx4 %s, v14, s[36:39], s9 offen offset:16' % vr(XR + 4, 4))
    def issue(c):
        slot = (c % NS) * 16384
        if c < NH:
            sw, sh = 40, 44
            a('s_add_u32 s14, s10, %d' % (c * 64 * 896))
            a('s_add_u32 s15, s11, %d' % (c * 128))
            vb = (10, 11)
        else:
            sw, sh = 52, 48
            cc = c - NH
            a('s_add_u32 s14, s10, %d' % (cc * 64 * 896))
            a('s_add_u32 s15, s12, %d' % (cc * 64 * 4096))
            vb = (8, 9)
        for q in range(2):
            a('s_add_u32 s60, s13, %d' % (slot + q * 1024))
            a('s_mov_b32 m0, s60')
            a('s_add_u32 s60, s60, 8192')
            a('buffer_load_dwordx4 v%d, s[%d:%d], s14 offen lds' % (6 + q, sw, sw + 3))
            a('s_mov_b32 m0, s60')
            a.nop(1)
            a('buffer_load_dwordx4 v%d, s[%d:%d], s15 offen lds' % (vb[q], sh, sh + 3))
    for c in range(NS - 1):
        issue(c)
    a('v_lshrrev_b32 v3, 4, v2')
    a('v_and_b32 v4, 15, v2')
    a('v_lshrrev_b32 v5, 2, v4')
    a('v_and_b32 v4, 3, v4')
    a('v_lshrrev_b32 v15, 1, v3')
    a('v_lshl_add_u32 v15, v15, 3, v5')
    a('v_lshlrev_b32 v15, 7, v15')
    a('v_lshrrev_b32 v16, 1, v5')
    a('v_lshlrev_b32 v16, 2, v16')
    a('v_and_b32 v17, 1, v4')
    a('v_lshlrev_b32 v17, 1, v17')
    a('v_and_b32 v18, 1, v3')
    a('v_add_u32 v17, v17, v18')
    a('s_lshl_b32 s8, s7, 2')
    a('v_add_u32 v17, s8, v17')
    a('v_xor_b32 v17, v17, v16')
    a('v_lshl_add_u32 v17, v17, 4, v15')
    a('v_lshrrev_b32 v18, 1, v4')
    a('v_lshl_add_u32 v17, v18, 3, v17')
    a('v_and_b32 v18, 1, v3')
    a('v_lshlrev_b32 v18, 1, v18')
    a('v_lshrrev_b32 v19, 1, v4')
    a('v_add_u32 v18, v18, v19')
    a('s_lshl_b32 s8, s6, 2')
    a('v_add_u32 v18, s8, v18')
    a('v_xor_b32 v18, v18, v16')
    a('v_lshl_add_u32 v18, v18, 4, v15')
    a('v_and_b32 v19, 1, v4')
    a('v_lshl_add_u32 v18, v19, 3, v18')
    a('v_add_u32 v18, 8192, v18')
    a('v_bfe_u32 v19, v12, 1, 3')
    for ks in range(4):
        a('v_add_u32 v%d, %d, v13' % (20 + ks, 2 * ks))
        a('v_xor_b32 v%d, v%d, v19' % (20 + ks, 20 + ks))
        a('v_lshlrev_b32 v%d, 4, v%d' % (20 + ks, 20 + ks))
        a('v_lshl_add_u32 v%d, v12, 7, v%d' % (20 + ks, 20 + ks))
        a('v_add_u32 v%d, 8192, v%d' % (20 + ks, 20 + ks))
    ACCB, ACCA = 64, 80
    for i in range(32):
        a('v_mov_b32 v%d, 0' % (ACCB + i))
    FA = [32, 40]
    def rd(c, ks, buf):
        slot = (c % NS) * 16384
        for h in range(2):
            a('ds_read_b64_tr_b16 %s, v17 offset:%d' % (vr(buf + 2 * h, 2), slot + ks * 2048 + h * 512))
        if c < NH:
            a('ds_read_b128 %s, v%d offset:%d' % (vr(buf + 4, 4), 20 + ks, slot))
            return 3
        for h in range(2):
            a('ds_read_b64_tr_b16 %s, v18 offset:%d' % (vr(buf + 4 + 2 * h, 2), slot + ks * 2048 + h * 512))
        return 4
    for c in range(NC):
        later = min(NS - 2, NC - 1 - c)
        a('s_waitcnt vmcnt(%d)' % (4 * later))
        a('s_barrier')
        if c + NS - 1 < NC:
            issue(c + NS - 1)
        acc = ACCB if c < NH else ACCA
        rd(c, 0, FA[0])
        for ks in range(4):
            cur = FA[ks & 1]
            if ks < 3:
                n = rd(c, ks + 1, FA[(ks + 1) & 1])
                a('s_waitcnt lgkmcnt(%d)' % n)
            else:
                a('s_waitcnt lgkmcnt(0)')
            a('v_mfma_f32_32x32x16_bf16 %s, %s, %s, %s' % (vr(acc, 16), vr(cur, 4), vr(cur + 4, 4), vr(acc, 16)))
    a.nop(14)
    T = 32
    for p in range(8):
        a0, a1 = ACCA + 2 * p, ACCA + 2 * p + 1
        b0, b1 = ACCB + 2 * p, ACCB + 2 * p + 1
        a('v_cvt_pk_bf16_f32 v%d, v%d, v%d' % (T, a0, a1))
        a('v_cvt_pk_bf16_f32 v%d, v%d, v%d' % (T + 1, b0, b1))
        a('v_lshlrev_b32 v%d, 16, v%d' % (a0, T))
        a('v_and_b32 v%d, 0xffff0000, v%d' % (a1, T))
        a('v_lshlrev_b32 v%d, 16, v%d' % (b0, T + 1))
        a('v_and_b32 v%d, 0xffff0000, v%d' % (b1, T + 1))
        a('v_lshlrev_b32 v%d, 16, v%d' % (T + 2, XR + p))
        a('v_and_b32 v%d, 0xffff0000, v%d' % (T + 3, XR + p))
        a('v_add_f32 v%d, v%d, v%d' % (T + 2, T + 2, a0))
        a('v_add_f32 v%d, v%d, v%d' % (T + 3, T + 3, a1))
        a('v_cvt_pk_bf16_f32 v%d, v%d, v%d' % (T, T + 2, T + 3))
        a('v_lshlrev_b32 v%d, 16, v%d' % (T + 2, T))
        a('v_and_b32 v%d, 0xffff0000, v%d' % (T + 3, T))
        a('v_add_f32 v%d, v%d, v%d' % (T + 2, T + 2, b0))
        a('v_add_f32 v%d, v%d, v%d' % (T + 3, T + 3, b1))
        a('v_cvt_pk_bf16_f32 v%d, v%d, v%d' % (40 + p, T + 2, T + 3))
    a('buffer_store_dwordx4 v[40:43], v14, s[56:59], s9 offen')
    a('buffer_store_dwordx4 v[44:47], v14, s[56:59], s9 offen offset:16')
    a.label('L_k3_end')
    a('s_endpgm')
    return a.text(), 96, NS * 16384
```

```python
import sys
from asmlib import *
import k0, k1, k2, k3

HEADER = open('parallel_sum__spectral_gfnet__glu_gated_geglu__prompt.s.ref').read().split('; Override launch')[0]

def build(kernels, path):
    s = HEADER
    for name, body, vg, grid, block, lds in kernels:
        s += '; @launch kernel=%s grid=(%d,1,1) block=(%d,1,1) lds=%d\n' % (name, grid, block, lds)
    s += '.amdgcn_target "amdgcn-amd-amdhsa--gfx950"\n.text\n'
    seen = set()
    for name, body, vg, grid, block, lds in kernels:
        if name in seen: continue
        seen.add(name)
        s += kernel_header(name) + body
    s += '.section .rodata,"a"\n'
    seen = set()
    for name, body, vg, grid, block, lds in kernels:
        if name in seen: continue
        seen.add(name)
        s += '.p2align 6\n' + kernel_desc(name, vg)
    open(path, 'w').write(s)

if __name__ == '__main__':
    ks = []
    b, vg, lds = k0.gen_k0()
    ks.append(('k0_kernel', b, vg, 256, 256, lds))
    b, vg, lds = k2.gen_k2()
    ks.append(('k2_kernel', b, vg, 225, 256, lds))
    b, vg, lds = k1.gen_k1()
    ks.append(('k1_kernel', b, vg, 224, 512, lds))
    b, vg, lds = k3.gen_k3()
    ks.append(('k3_kernel', b, vg, 224, 256, lds))
    build(ks, sys.argv[1] if len(sys.argv) > 1 else 'cur.s')
```

```python
import struct, math

def f32bits(x):
    return struct.unpack('<I', struct.pack('<f', x))[0]

class Asm:
    def __init__(self):
        self.lines = []
    def __call__(self, s):
        for ln in s.strip('\n').split('\n'):
            ln = ln.strip()
            if ln:
                self.lines.append('    ' + ln)
    def label(self, l):
        self.lines.append(l + ':')
    def c(self, s):
        self.lines.append('    ; ' + s)
    def nop(self, n):
        while n > 0:
            k = min(n, 16)
            self.lines.append('    s_nop %d' % (k - 1))
            n -= k
    def text(self):
        return '\n'.join(self.lines) + '\n'

    def srd(self, d, base_lo, base_hi, nbytes, off=0):
        if off:
            self('s_add_u32 s%d, s%d, 0x%x' % (d, base_lo, off))
            self('s_addc_u32 s%d, s%d, 0' % (d + 1, base_hi))
        else:
            self('s_mov_b32 s%d, s%d' % (d, base_lo))
            self('s_mov_b32 s%d, s%d' % (d + 1, base_hi))
        self('s_mov_b32 s%d, 0x%x' % (d + 2, nbytes))
        self('s_mov_b32 s%d, 0x00020000' % (d + 3))

def vr(a, n):
    return 'v[%d:%d]' % (a, a + n - 1)

def kernel_header(name):
    return '.globl %s\n.p2align 8\n.type %s,@function\n%s:\n' % (name, name, name)

def kernel_desc(name, vgpr, sgpr=102):
    acc = (vgpr + 3) // 4 * 4
    return ('.amdhsa_kernel %s\n'
            '  .amdhsa_next_free_vgpr %d\n'
            '  .amdhsa_next_free_sgpr %d\n'
            '  .amdhsa_accum_offset %d\n'
            '  .amdhsa_group_segment_fixed_size 0\n'
            '  .amdhsa_kernarg_size 80\n'
            '  .amdhsa_user_sgpr_count 2\n'
            '  .amdhsa_user_sgpr_kernarg_segment_ptr 1\n'
            '  .amdhsa_system_sgpr_workgroup_id_x 1\n'
            '.end_amdhsa_kernel\n') % (name, vgpr, sgpr, acc)

STAMPS = False
def stamp(a, idx):
    if not STAMPS: return
    a('s_memtime s[%d:%d]' % (64 + 2 * idx, 65 + 2 * idx))
    a('s_waitcnt lgkmcnt(0)')

def dump_stamps(a, n, wg=0, lbl='x'):
    if not STAMPS: return
    a('s_cmp_lg_u32 s2, %d' % wg)
    a('s_cbranch_scc1 L_nostamp_%s' % lbl)
    a('v_cmp_gt_u32 vcc, 1, v0')
    a('s_and_saveexec_b64 s[62:63], vcc')
    a('s_cbranch_execz L_nostamp2_%s' % lbl)
    a('s_mov_b32 s96, s32')
    a('s_mov_b32 s97, s33')
    a('s_mov_b32 s98, 256')
    a('s_mov_b32 s99, 0x00020000')
    a('v_mov_b32 v1, 0')
    for i in range(n):
        a('v_mov_b32 v2, s%d' % (64 + 2 * i))
        a('v_mov_b32 v3, s%d' % (65 + 2 * i))
        a('buffer_store_dwordx2 v[2:3], v1, s[96:99], 0 offen offset:%d' % (8 * i))
        a.nop(2)
    a.label('L_nostamp2_%s' % lbl)
    a('s_mov_b64 exec, s[62:63]')
    a.label('L_nostamp_%s' % lbl)
```

```python
from asmlib import *

XN_OFF = 0
ZT_OFF = 2 << 20
YT_OFF = 4 << 20
G_OFF = 6 << 20
H_OFF = 8 << 20
XN_BYTES = 2048 * 448 * 2
ZT_BYTES = 256 * 2 * 2048 * 2
YT_BYTES = 225 * 2 * 2048 * 2
G_ROWS = 480
G_BYTES = G_ROWS * 896
H_BYTES = 2048 * 1792 * 2
WT_OFF = 16 << 20
WT_BYTES = 225 * 2 * 4096

def load_ptrs(a):
    a('s_load_dwordx16 s[16:31], s[0:1], 0')
    a('s_load_dwordx4 s[32:35], s[0:1], 64')

def mod448(a, p, t1, out):
    a('v_lshrrev_b32 v%d, 6, v%d' % (t1, p))
    a('v_mul_u32_u24 v%d, 9363, v%d' % (t1, t1))
    a('v_lshrrev_b32 v%d, 16, v%d' % (t1, t1))
    a('v_mul_u32_u24 v%d, 448, v%d' % (t1, t1))
    a('v_sub_u32 v%d, v%d, v%d' % (out, p, t1))

def gen_k0():
    a = Asm()
    PITCH = 928
    a('s_cmp_ge_u32 s2, 256')
    a('s_cbranch_scc1 L_k0_end')
    stamp(a, 0)
    load_ptrs(a)
    a('s_lshr_b32 s3, s2, 2')
    a('s_and_b32 s4, s2, 3')
    a('v_lshrrev_b32 v1, 3, v0')
    a('v_and_b32 v2, 7, v0')
    a('v_mul_u32_u24 v3, 896, v1')
    a('v_lshl_add_u32 v3, v2, 4, v3')
    a('s_mul_i32 s5, s3, 28672')
    a('s_waitcnt lgkmcnt(0)')
    a.srd(36, 16, 17, XN_BYTES)
    a.srd(40, 34, 35, XN_BYTES, XN_OFF)
    a.srd(44, 34, 35, ZT_BYTES, ZT_OFF)
    a.srd(48, 34, 35, G_BYTES, G_OFF)
    for i in range(7):
        a('buffer_load_dwordx4 %s, v3, s[36:39], s5 offen offset:%d' % (vr(8 + 4 * i, 4), 128 * i))
    a.srd(52, 18, 19, 2048 * 225 * 2)
    a.srd(56, 20, 21, 2048 * 225 * 2)
    a.srd(60, 34, 35, WT_BYTES, WT_OFF)
    a('s_lshl_b32 s8, s4, 3')
    a('s_lshl_b32 s8, s8, 6')
    a('s_add_u32 s8, s8, s3')
    a('s_mul_i32 s8, s8, 450')
    a('v_lshlrev_b32 v36, 1, v0')
    for e in range(8):
        for pl in range(2):
            a('s_add_u32 s9, s8, %d' % (e * 64 * 450))
            a('buffer_load_ushort v%d, v36, s[%d:%d], s9 offen' % (212 + 8 * pl + e, 52 + 4 * pl, 55 + 4 * pl))
    a('v_and_b32 v4, 15, v0')
    a('v_lshrrev_b32 v5, 6, v0')
    a('v_lshl_add_u32 v4, v5, 4, v4')
    a('s_lshl_b32 s6, s4, 6')
    a('v_add_u32 v4, s6, v4')
    a('v_bfe_u32 v5, v0, 4, 2')
    a('v_lshlrev_b32 v5, 3, v5')
    inv448 = f32bits(1.0 / 448.0)
    a('s_mov_b32 s7, 0x%x' % inv448)
    a('v_cvt_f32_u32 v6, v4')
    a('v_mul_f32 v6, s7, v6')
    a('v_sin_f32 v7, v6')
    a('v_cos_f32 v6, v6')
    BF = 100
    C0, S0 = 44, 52
    for t in range(14):
        a('v_add_u32 v40, %d, v5' % (32 * t))
        a('v_mul_u32_u24 v41, v40, v4')
        mod448(a, 41, 42, 43)
        a('v_cvt_f32_u32 v43, v43')
        a('v_mul_f32 v43, s7, v43')
        a('v_cos_f32 v%d, v43' % C0)
        a('v_sin_f32 v%d, v43' % S0)
        a.nop(1)
        for j in range(7):
            a('v_mul_f32 v40, v%d, v7' % (S0 + j))
            a('v_mul_f32 v41, v%d, v7' % (C0 + j))
            a('v_fma_f32 v%d, v%d, v6, -v40' % (C0 + j + 1, C0 + j))
            a('v_fma_f32 v%d, v%d, v6, v41' % (S0 + j + 1, S0 + j))
        for q in range(4):
            a('v_cvt_pk_bf16_f32 v%d, v%d, v%d' % (BF + 8 * t + q, C0 + 2 * q, C0 + 2 * q + 1))
            a('v_cvt_pk_bf16_f32 v%d, -v%d, -v%d' % (BF + 8 * t + 4 + q, S0 + 2 * q, S0 + 2 * q + 1))
    stamp(a, 1)
    a('s_cmp_ge_u32 s2, 224')
    a('s_cbranch_scc1 L_k0_nog')
    a('s_mov_b32 s8, 0x%x' % f32bits(2.0 / 448.0))
    a('s_cmp_eq_u32 s2, 0')
    a('s_cselect_b32 s8, 0x%x, s8' % inv448)
    a('s_cmp_eq_u32 s2, 224')
    a('s_cselect_b32 s8, 0x%x, s8' % inv448)
    a('s_cmp_gt_u32 s2, 224')
    a('s_cselect_b32 s8, 0, s8')
    a('v_cmp_gt_u32 vcc, 224, v0')
    a('s_and_saveexec_b64 s[10:11], vcc')
    a('s_cbranch_execz L_k0_g_restore')
    a('v_cmp_le_u32 vcc, 112, v0')
    a.nop(2)
    a('v_cndmask_b32 v40, 0, 1, vcc')
    a('v_mul_u32_u24 v41, 112, v40')
    a('v_sub_u32 v41, v0, v41')
    a('v_cvt_f32_u32 v42, v40')
    a('v_mul_f32 v42, 0.25, v42')
    a('v_mov_b32 v47, s2')
    a('s_cmp_lg_u32 s2, 0')
    a('s_cbranch_scc1 L_k0_g_f')
    a('v_mul_u32_u24 v47, 224, v40')
    a('v_mov_b32 v42, 0')
    a.label('L_k0_g_f')
    a('v_lshlrev_b32 v43, 2, v41')
    for e in range(4):
        a('v_add_u32 v44, %d, v43' % e)
        a('v_mul_u32_u24 v44, v47, v44')
        mod448(a, 44, 45, 46)
        a('v_cvt_f32_u32 v46, v46')
        a('v_fma_f32 v46, v46, s7, v42')
        a('v_cos_f32 v%d, v46' % (48 + e))
        a.nop(1)
        a('v_mul_f32 v%d, s8, v%d' % (48 + e, 48 + e))
    a('v_cvt_pk_bf16_f32 v52, v48, v49')
    a('v_cvt_pk_bf16_f32 v53, v50, v51')
    a('s_lshl_b32 s9, s2, 1')
    a('v_add_u32 v44, s9, v40')
    a('v_mul_u32_u24 v44, 896, v44')
    a('v_lshl_add_u32 v44, v41, 3, v44')
    a('buffer_store_dwordx2 v[52:53], v44, s[48:51], 0 offen')
    a.label('L_k0_g_restore')
    a('s_mov_b64 exec, s[10:11]')
    a.label('L_k0_nog')
    stamp(a, 2)
    F0 = 40
    a('s_waitcnt vmcnt(0)')
    stamp(a, 3)
    a('v_cmp_gt_u32 vcc, 225, v0')
    a('s_and_saveexec_b64 s[10:11], vcc')
    a('s_cbranch_execz L_k0_wt_restore')
    a('v_lshlrev_b32 v36, 13, v0')
    for pl in range(2):
        for q in range(4):
            a('v_lshl_or_b32 v%d, v%d, 16, v%d' % (228 + 4 * pl + q, 212 + 8 * pl + 2 * q + 1, 212 + 8 * pl + 2 * q))
    a('s_lshl_b32 s8, s3, 6')
    a('s_lshl_b32 s9, s4, 4')
    a('s_add_u32 s8, s8, s9')
    a('s_add_u32 s9, s8, 4096')
    a('buffer_store_dwordx4 v[228:231], v36, s[60:63], s8 offen')
    a('buffer_store_dwordx4 v[232:235], v36, s[60:63], s9 offen')
    a.label('L_k0_wt_restore')
    a('s_mov_b64 exec, s[10:11]')
    for i in range(28):
        a('v_lshlrev_b32 v%d, 16, v%d' % (F0 + 2 * i, 8 + i))
        a('v_and_b32 v%d, 0xffff0000, v%d' % (F0 + 2 * i + 1, 8 + i))
    for k in range(4):
        a('v_add_f32 v%d, v%d, v%d' % (96 + k, F0 + k, F0 + 4 + k))
    for i in range(8, 56):
        a('v_add_f32 v%d, v%d, v%d' % (96 + (i & 3), 96 + (i & 3), F0 + i))
    a('v_add_f32 v96, v96, v97')
    a('v_add_f32 v98, v98, v99')
    a('v_add_f32 v96, v96, v98')
    def red8(r):
        a.nop(2)
        a('v_add_f32_dpp v%d, v%d, v%d quad_perm:[1,0,3,2] row_mask:0xf bank_mask:0xf' % (r, r, r))
        a.nop(2)
        a('v_add_f32_dpp v%d, v%d, v%d quad_perm:[2,3,0,1] row_mask:0xf bank_mask:0xf' % (r, r, r))
        a.nop(2)
        a('v_add_f32_dpp v%d, v%d, v%d row_half_mirror row_mask:0xf bank_mask:0xf' % (r, r, r))
    red8(96)
    a('v_mul_f32 v97, s7, v96')
    a('v_mov_b32 v96, 0')
    a('v_mov_b32 v98, 0')
    for i in range(56):
        acc = 96 if (i & 1) == 0 else 98
        a('v_sub_f32 v99, v%d, v97' % (F0 + i))
        a('v_fmac_f32 v%d, v99, v99' % acc)
    a('v_add_f32 v96, v96, v98')
    red8(96)
    a('v_mul_f32 v96, s7, v96')
    a('v_cvt_pk_bf16_f32 v98, v97, v96')
    a('v_lshlrev_b32 v97, 16, v98')
    a('v_and_b32 v96, 0xffff0000, v98')
    a('v_add_f32 v96, 0x%x, v96' % f32bits(1e-5))
    a('v_cvt_pk_bf16_f32 v96, v96, v96')
    a('v_lshlrev_b32 v96, 16, v96')
    a('v_sqrt_f32 v96, v96')
    a.nop(1)
    a('v_cvt_pk_bf16_f32 v96, v96, v96')
    a('v_lshlrev_b32 v96, 16, v96')
    a('v_rcp_f32 v96, v96')
    a.nop(1)
    for i in range(28):
        x0, x1 = F0 + 2 * i, F0 + 2 * i + 1
        a('v_sub_f32 v%d, v%d, v97' % (x0, x0))
        a('v_sub_f32 v%d, v%d, v97' % (x1, x1))
        a('v_cvt_pk_bf16_f32 v99, v%d, v%d' % (x0, x1))
        a('v_lshlrev_b32 v%d, 16, v99' % x0)
        a('v_and_b32 v%d, 0xffff0000, v99' % x1)
        a('v_mul_f32 v%d, v%d, v96' % (x0, x0))
        a('v_mul_f32 v%d, v%d, v96' % (x1, x1))
        a('v_cvt_pk_bf16_f32 v%d, v%d, v%d' % (8 + i, x0, x1))
    a('v_mul_u32_u24 v98, %d, v1' % PITCH)
    a('v_lshl_add_u32 v98, v2, 4, v98')
    for i in range(7):
        a('ds_write_b128 v98, %s offset:%d' % (vr(8 + 4 * i, 4), 128 * i))
    a('s_cmp_lg_u32 s4, 0')
    a('s_cbranch_scc1 L_k0_noxn')
    for i in range(7):
        a('buffer_store_dwordx4 %s, v3, s[40:43], s5 offen offset:%d' % (vr(8 + 4 * i, 4), 128 * i))
    a.label('L_k0_noxn')
    stamp(a, 4)
    ACC = 60
    for i in range(16):
        a('v_mov_b32 v%d, 0' % (ACC + i))
    a('v_and_b32 v84, 15, v0')
    a('v_lshrrev_b32 v85, 2, v84')
    a('v_and_b32 v84, 3, v84')
    a('v_lshl_add_u32 v84, v85, 3, v84')
    a('v_mul_u32_u24 v84, %d, v84' % PITCH)
    a('v_lshl_add_u32 v84, v5, 1, v84')
    a('s_waitcnt lgkmcnt(0)')
    a('s_barrier')
    stamp(a, 5)
    AF = [76, 88]
    AF = [76, 40]
    def rd(t, buf):
        a('ds_read_b128 %s, v84 offset:%d' % (vr(buf, 4), 64 * t))
        a('ds_read_b128 %s, v84 offset:%d' % (vr(buf + 4, 4), 64 * t + 4 * PITCH))
    rd(0, AF[0])
    for t in range(14):
        cur = AF[t & 1]
        if t + 1 < 14:
            rd(t + 1, AF[(t + 1) & 1])
            a('s_waitcnt lgkmcnt(2)')
        else:
            a('s_waitcnt lgkmcnt(0)')
        for mt in range(2):
            for c in range(2):
                d = ACC + 8 * mt + 4 * c
                a('v_mfma_f32_16x16x32_bf16 %s, %s, %s, %s' % (vr(d, 4), vr(cur + 4 * mt, 4), vr(BF + 8 * t + 4 * c, 4), vr(d, 4)))
    a.nop(10)
    stamp(a, 6)
    a('v_lshlrev_b32 v85, 13, v4')
    a('v_lshl_add_u32 v85, v5, 1, v85')
    a('v_add_u32 v86, 4096, v85')
    a('s_lshl_b32 s6, s3, 6')
    for c in range(2):
        o = 88 + 4 * c
        for mt in range(2):
            d = ACC + 8 * mt + 4 * c
            a('v_cvt_pk_bf16_f32 v%d, v%d, v%d' % (o + 2 * mt, d, d + 1))
            a('v_cvt_pk_bf16_f32 v%d, v%d, v%d' % (o + 2 * mt + 1, d + 2, d + 3))
        a('buffer_store_dwordx4 %s, v%d, s[44:47], s6 offen' % (vr(o, 4), 85 + c))
    a('s_waitcnt vmcnt(0)') if STAMPS else None
    stamp(a, 7)
    dump_stamps(a, 8, 100, 'k0')
    a.label('L_k0_end')
    a('s_endpgm')
    return a.text(), 236, 32 * PITCH
```

```python
from asmlib import *
from k0 import *

def gelu_epilogue(a, ACC, T, OUT, store):
    for v in range(2):
        for p in range(8):
            g0, g1 = ACC + 16 * v + 2 * p, ACC + 16 * v + 2 * p + 1
            u0, u1 = g0 + 32, g1 + 32
            a('v_cvt_pk_bf16_f32 v%d, v%d, v%d' % (T, g0, g1))
            a('v_cvt_pk_bf16_f32 v%d, v%d, v%d' % (T + 1, u0, u1))
            a('v_lshlrev_b32 v%d, 16, v%d' % (g0, T))
            a('v_and_b32 v%d, 0xffff0000, v%d' % (g1, T))
            a('v_lshlrev_b32 v%d, 16, v%d' % (u0, T + 1))
            a('v_and_b32 v%d, 0xffff0000, v%d' % (u1, T + 1))
            for k, g in enumerate((g0, g1)):
                a('v_mul_f32 v%d, v%d, v%d' % (T + 2 + k, g, g))
            for k, g in enumerate((g0, g1)):
                a('v_fma_f32 v%d, v%d, s12, 1.0' % (T + 2 + k, T + 2 + k))
            for k, g in enumerate((g0, g1)):
                a('v_mul_f32 v%d, v%d, v%d' % (T + 2 + k, T + 2 + k, g))
            for k, g in enumerate((g0, g1)):
                a('v_mul_f32 v%d, s13, v%d' % (T + 2 + k, T + 2 + k))
            for k, g in enumerate((g0, g1)):
                a('v_exp_f32 v%d, v%d' % (T + 2 + k, T + 2 + k))
            a.nop(1)
            for k, g in enumerate((g0, g1)):
                a('v_add_f32 v%d, 1.0, v%d' % (T + 2 + k, T + 2 + k))
            for k, g in enumerate((g0, g1)):
                a('v_rcp_f32 v%d, v%d' % (T + 2 + k, T + 2 + k))
            a.nop(1)
            for k, g in enumerate((g0, g1)):
                a('v_mul_f32 v%d, v%d, v%d' % (T + 2 + k, T + 2 + k, g))
            a('v_cvt_pk_bf16_f32 v%d, v%d, v%d' % (T, T + 2, T + 3))
            a('v_lshlrev_b32 v%d, 16, v%d' % (T + 2, T))
            a('v_and_b32 v%d, 0xffff0000, v%d' % (T + 3, T))
            a('v_mul_f32 v%d, v%d, v%d' % (T + 2, T + 2, u0))
            a('v_mul_f32 v%d, v%d, v%d' % (T + 3, T + 3, u1))
            a('v_cvt_pk_bf16_f32 v%d, v%d, v%d' % (OUT + 8 * v + p, T + 2, T + 3))
        for hh in range(2):
            store(v, hh, OUT + 8 * v + 4 * hh)

def gen_k1():
    a = Asm()
    NS = 3
    STG = 49152
    BOFF = 32768
    UPO = 8192
    a('s_cmp_ge_u32 s2, 224')
    a('s_cbranch_scc1 L_k1_end')
    stamp(a, 0)
    load_ptrs(a)
    a('v_lshrrev_b32 v1, 6, v0')
    a('v_and_b32 v2, 63, v0')
    a('v_readfirstlane_b32 s3, v1')
    a('s_and_b32 s4, s2, 7')
    a('s_lshr_b32 s5, s2, 3')
    a('s_lshr_b32 s6, s4, 2')
    a('s_and_b32 s7, s4, 3')
    a('s_lshl_b32 s6, s6, 2')
    a('s_and_b32 s8, s5, 3')
    a('s_add_u32 s4, s6, s8')
    a('s_mul_i32 s7, s7, 7')
    a('s_lshr_b32 s5, s5, 2')
    a('s_add_u32 s5, s7, s5')
    a('v_and_b32 v3, 31, v2')
    a('v_lshl_add_u32 v3, v1, 5, v3')
    a('v_lshrrev_b32 v4, 5, v2')
    a('s_mul_i32 s6, s4, 229376')
    a('v_lshrrev_b32 v5, 3, v2')
    a('v_lshl_add_u32 v5, v1, 5, v5')
    a('v_mul_u32_u24 v5, 896, v5')
    a('v_and_b32 v7, 7, v2')
    a('v_lshrrev_b32 v8, 4, v2')
    a('v_xor_b32 v8, v7, v8')
    a('v_lshl_add_u32 v20, v8, 4, v5')
    a('v_xor_b32 v8, 4, v8')
    a('v_lshl_add_u32 v21, v8, 4, v5')
    a('v_add_u32 v21, 7168, v21')
    a('v_lshrrev_b32 v6, 3, v2')
    a('v_lshl_add_u32 v6, v1, 3, v6')
    a('v_mul_u32_u24 v6, 3584, v6')
    a('v_bfe_u32 v8, v2, 4, 1')
    a('v_lshlrev_b32 v8, 2, v8')
    a('v_xor_b32 v7, v7, v8')
    a('v_lshl_add_u32 v6, v7, 4, v6')
    a('s_lshl_b32 s7, s5, 7')
    a('s_lshl_b32 s8, s3, 10')
    a('s_lshl_b32 s11, s3, 12')
    a('s_waitcnt lgkmcnt(0)')
    a.srd(36, 34, 35, XN_BYTES, XN_OFF)
    a.srd(40, 24, 25, 448 * 3584)
    a.srd(44, 26, 27, 448 * 3584)
    a.srd(48, 34, 35, H_BYTES, H_OFF)
    def issue(c):
        sb = (c % NS) * STG
        a('s_add_u32 s9, s7, %d' % (c * 229376))
        a('s_add_u32 s10, s8, %d' % (sb + BOFF))
        a('s_mov_b32 m0, s10')
        a('s_add_u32 s10, s10, %d' % UPO)
        a('buffer_load_dwordx4 v6, s[40:43], s9 offen lds')
        a('s_mov_b32 m0, s10')
        a('s_add_u32 s14, s6, %d' % (c * 128))
        a('buffer_load_dwordx4 v6, s[44:47], s9 offen lds')
        for q in range(4):
            a('s_add_u32 s10, s11, %d' % (sb + q * 1024))
            a('s_mov_b32 m0, s10')
            if q == 2:
                a('s_add_u32 s14, s14, 14336')
            else:
                a.nop(1)
            a('buffer_load_dwordx4 v%d, s[36:39], s14 offen lds' % (20 + (q & 1)))
    for c in range(NS - 1):
        issue(c)
    stamp(a, 1)
    a('v_lshrrev_b32 v8, 4, v2')
    a('v_and_b32 v9, 15, v2')
    a('v_lshrrev_b32 v10, 2, v9')
    a('v_and_b32 v11, 3, v9')
    a('v_lshrrev_b32 v12, 1, v8')
    a('v_lshl_add_u32 v12, v12, 3, v10')
    a('v_lshlrev_b32 v12, 7, v12')
    a('v_and_b32 v13, 1, v11')
    a('v_lshlrev_b32 v13, 1, v13')
    a('v_and_b32 v14, 1, v8')
    a('v_add_u32 v13, v13, v14')
    a('v_lshrrev_b32 v14, 1, v10')
    a('v_lshl_add_u32 v13, v14, 2, v13')
    a('v_lshl_add_u32 v12, v13, 4, v12')
    a('v_lshrrev_b32 v14, 1, v11')
    a('v_lshl_add_u32 v16, v14, 3, v12')
    a('v_xor_b32 v17, 64, v16')
    VB = 24
    for s in range(NS):
        a('v_add_u32 v%d, %d, v16' % (VB + 2 * s, s * STG + BOFF))
        a('v_add_u32 v%d, %d, v17' % (VB + 2 * s + 1, s * STG + BOFF))
    VX = 96
    a('v_bfe_u32 v9, v3, 1, 3')
    for kk in range(4):
        a('v_add_u32 v10, %d, v4' % (2 * kk))
        a('v_xor_b32 v10, v10, v9')
        a('v_lshlrev_b32 v10, 4, v10')
        a('v_lshl_add_u32 v10, v3, 7, v10')
        for s in range(NS):
            a('v_add_u32 v%d, %d, v10' % (VX + 4 * s + kk, s * STG))
    WF = [32, 52]
    ACC = 112
    for i in range(64):
        a('v_mov_b32 v%d, 0' % (ACC + i))
    def rd(s, kk, buf):
        a('ds_read_b128 %s, v%d' % (vr(buf + 16, 4), VX + 4 * s + kk))
        for u in range(4):
            for h in range(2):
                a('ds_read_b64_tr_b16 %s, v%d offset:%d' % (vr(buf + 4 * u + 2 * h, 2), VB + 2 * s + (u & 1), (u >> 1) * UPO + kk * 2048 + h * 512))
    for c in range(7):
        s = c % NS
        later = min(NS - 2, 6 - c)
        a('s_waitcnt vmcnt(%d)' % (6 * later))
        a('s_barrier')
        stamp(a, 2 + c)
        if c + NS - 1 < 7:
            issue(c + NS - 1)
        rd(s, 0, WF[0])
        for kk in range(4):
            cur = WF[kk & 1]
            if kk < 3:
                rd(s, kk + 1, WF[(kk + 1) & 1])
                a('s_waitcnt lgkmcnt(9)')
            else:
                a('s_waitcnt lgkmcnt(0)')
            for u in range(4):
                d = ACC + 16 * u
                a('v_mfma_f32_32x32x16_bf16 %s, %s, %s, %s' % (vr(d, 16), vr(cur + 4 * u, 4), vr(cur + 16, 4), vr(d, 16)))
    a.nop(14)
    stamp(a, 9)
    a('s_mov_b32 s12, 0x%x' % f32bits(0.044715))
    a('s_mov_b32 s13, 0x%x' % f32bits(-2.0 * 0.7978845608028654 * 1.4426950408889634))
    a('v_mul_u32_u24 v5, 3584, v3')
    a('v_lshl_add_u32 v5, v4, 5, v5')
    a('s_mul_i32 s14, s4, %d' % (256 * 3584))
    a('s_add_u32 s14, s14, s7')
    def store(v, hh, reg):
        a('buffer_store_dwordx4 %s, v5, s[48:51], s14 offen offset:%d' % (vr(reg, 4), 64 * v + 16 * hh))
    gelu_epilogue(a, ACC, 32, 64, store)
    stamp(a, 10)
    a('s_waitcnt vmcnt(0)') if STAMPS else None
    stamp(a, 11)
    dump_stamps(a, 12, 100, 'k1')
    a.label('L_k1_end')
    a('s_endpgm')
    return a.text(), 176, NS * STG
```

```python
from asmlib import *
from k0 import *

def cs(a, dc, ds, idx, sc, tmp):
    a('v_cvt_f32_u32 v%d, v%d' % (tmp, idx))
    a('v_mul_f32 v%d, s%d, v%d' % (tmp, sc, tmp))
    a('v_cos_f32 v%d, v%d' % (dc, tmp))
    a('v_sin_f32 v%d, v%d' % (ds, tmp))

def gen_k2():
    a = Asm()
    a('s_cmp_ge_u32 s2, 225')
    a('s_cbranch_scc1 L_k2_end')
    stamp(a, 0)
    load_ptrs(a)
    a('v_lshrrev_b32 v1, 6, v0')
    a('v_and_b32 v6, 15, v0')
    a('v_readfirstlane_b32 s3, v1')
    a('v_lshl_add_u32 v4, v1, 4, v6')
    a('v_bfe_u32 v5, v0, 4, 2')
    a('v_lshlrev_b32 v2, 4, v0')
    a('s_lshl_b32 s4, s2, 13')
    a('s_add_u32 s5, s4, 4096')
    a('s_lshl_b32 s6, s3, 10')
    a('s_waitcnt lgkmcnt(0)')
    a.srd(36, 34, 35, ZT_BYTES, ZT_OFF)
    a.srd(40, 34, 35, YT_BYTES, YT_OFF)
    a('s_mov_b32 m0, s6')
    a('s_add_u32 s7, s6, 4096')
    a('buffer_load_dwordx4 v2, s[36:39], s4 offen lds')
    a('s_mov_b32 m0, s7')
    a.nop(1)
    a('buffer_load_dwordx4 v2, s[36:39], s5 offen lds')
    a.srd(44, 34, 35, WT_BYTES, WT_OFF)
    a('v_lshlrev_b32 v3, 6, v4')
    a('v_lshl_add_u32 v3, v5, 3, v3')
    WR, WI = 80, 88
    WP = 176
    for pl in range(2):
        for mt in range(2):
            a('buffer_load_dwordx2 %s, v3, s[44:47], s%d offen offset:%d' % (vr(WP + 4 * pl + 2 * mt, 2), 4 + pl, 32 * mt))
    stamp(a, 1)
    a('s_mov_b32 s10, 0x%x' % f32bits(1.0 / 64))
    a('s_mov_b32 s11, 0x%x' % f32bits(1.0 / 32))
    a('s_mov_b32 s12, 0x%x' % f32bits(1.0 / 2048))
    C1, S1, NS1 = 16, 24, 32
    C2, S2, NS2 = 40, 48, 56
    TWC, TWS = 64, 72
    T0 = 152
    a('v_lshlrev_b32 v7, 3, v5')
    for ks in range(2):
        for j in range(8):
            a('v_add_u32 v%d, %d, v7' % (T0, 32 * ks + j))
            a('v_mul_u32_u24 v%d, v%d, v4' % (T0, T0))
            a('v_and_b32 v%d, 63, v%d' % (T0, T0))
            cs(a, T0 + 2 + j, T0 + 10 + j, T0, 10, T0 + 1)
        a.nop(1)
        for q in range(4):
            a('v_cvt_pk_bf16_f32 v%d, v%d, v%d' % (C1 + 4 * ks + q, T0 + 2 + 2 * q, T0 + 3 + 2 * q))
            a('v_cvt_pk_bf16_f32 v%d, v%d, v%d' % (S1 + 4 * ks + q, T0 + 10 + 2 * q, T0 + 11 + 2 * q))
            a('v_cvt_pk_bf16_f32 v%d, -v%d, -v%d' % (NS1 + 4 * ks + q, T0 + 10 + 2 * q, T0 + 11 + 2 * q))
    a('v_lshlrev_b32 v7, 2, v5')
    for mt in range(2):
        a('v_add_u32 v8, %d, v6' % (16 * mt))
        for j in range(8):
            off = j if j < 4 else 16 + j - 4
            a('v_add_u32 v%d, %d, v7' % (T0, off))
            a('v_mul_u32_u24 v%d, v%d, v8' % (T0, T0))
            a('v_and_b32 v%d, 31, v%d' % (T0, T0))
            cs(a, T0 + 2 + j, T0 + 10 + j, T0, 11, T0 + 1)
        a.nop(1)
        for q in range(4):
            a('v_cvt_pk_bf16_f32 v%d, v%d, v%d' % (C2 + 4 * mt + q, T0 + 2 + 2 * q, T0 + 3 + 2 * q))
            a('v_cvt_pk_bf16_f32 v%d, v%d, v%d' % (S2 + 4 * mt + q, T0 + 10 + 2 * q, T0 + 11 + 2 * q))
            a('v_cvt_pk_bf16_f32 v%d, -v%d, -v%d' % (NS2 + 4 * mt + q, T0 + 10 + 2 * q, T0 + 11 + 2 * q))
    for mt in range(2):
        for r in range(4):
            i = 4 * mt + r
            a('v_add_u32 v%d, %d, v7' % (T0, 16 * mt + r))
            a('v_mul_u32_u24 v%d, v%d, v4' % (T0, T0))
            cs(a, TWC + i, TWS + i, T0, 12, T0 + 1)
    a('v_lshrrev_b32 v8, 2, v6')
    a('v_and_b32 v9, 3, v6')
    a('v_lshl_add_u32 v8, v5, 3, v8')
    a('v_lshlrev_b32 v8, 6, v8')
    a('v_lshl_add_u32 v10, v9, 3, v8')
    a('v_lshl_add_u32 v11, v9, 4, v8')
    a('v_add_u32 v11, 8192, v11')
    ZR, ZI = 96, 112
    ACC = 128
    def TR(mt): return ACC + 4 * mt
    def TI(mt): return ACC + 8 + 4 * mt
    BR, BI = 144, 148
    def zero_acc():
        for i in range(16):
            a('v_mov_b32 v%d, 0' % (ACC + i))
    zero_acc()
    stamp(a, 2)
    a('s_waitcnt vmcnt(4)')
    a('s_barrier')
    stamp(a, 3)
    def read_frags(base, mtstep):
        for pl, Z in ((0, ZR), (1, ZI)):
            for mt in range(2):
                for ks in range(2):
                    for h in range(2):
                        d = Z + 8 * mt + 4 * ks + 2 * h
                        a('ds_read_b64_tr_b16 %s, v%d offset:%d' % (vr(d, 2), base, pl * 4096 + ks * 2048 + h * 256 + mt * mtstep))
        a('s_waitcnt lgkmcnt(0)')
    def mf(d, x, y):
        a('v_mfma_f32_16x16x32_bf16 %s, %s, %s, %s' % (vr(d, 4), vr(x, 4), vr(y, 4), vr(d, 4)))
    read_frags(10, 32)
    for mt in range(2):
        for ks in range(2):
            zr, zi = ZR + 8 * mt + 4 * ks, ZI + 8 * mt + 4 * ks
            mf(TR(mt), zr, C1 + 4 * ks)
            mf(TI(mt), zi, C1 + 4 * ks)
            mf(TR(mt), zi, S1 + 4 * ks)
            mf(TI(mt), zr, NS1 + 4 * ks)
    a.nop(10)
    def twiddle(conj):
        for i in range(8):
            tr_, ti_ = ACC + i, ACC + 8 + i
            a('v_mul_f32 v%d, v%d, v%d' % (T0 + i, tr_, TWC + i))
            a('v_mul_f32 v%d, v%d, v%d' % (T0 + 8 + i, ti_, TWC + i))
            if not conj:
                a('v_fma_f32 v%d, v%d, v%d, v%d' % (T0 + i, ti_, TWS + i, T0 + i))
                a('v_fma_f32 v%d, -v%d, v%d, v%d' % (T0 + 8 + i, tr_, TWS + i, T0 + 8 + i))
            else:
                a('v_fma_f32 v%d, -v%d, v%d, v%d' % (T0 + i, ti_, TWS + i, T0 + i))
                a('v_fma_f32 v%d, v%d, v%d, v%d' % (T0 + 8 + i, tr_, TWS + i, T0 + 8 + i))
    def pack():
        for q in range(4):
            a('v_cvt_pk_bf16_f32 v%d, v%d, v%d' % (BR + q, T0 + 2 * q, T0 + 2 * q + 1))
            a('v_cvt_pk_bf16_f32 v%d, v%d, v%d' % (BI + q, T0 + 8 + 2 * q, T0 + 8 + 2 * q + 1))
    twiddle(False)
    pack()
    zero_acc()
    a.nop(2)
    for mt in range(2):
        mf(TR(mt), C2 + 4 * mt, BR)
        mf(TI(mt), C2 + 4 * mt, BI)
        mf(TR(mt), S2 + 4 * mt, BI)
        mf(TI(mt), NS2 + 4 * mt, BR)
    stamp(a, 4)
    a('s_waitcnt vmcnt(0)')
    stamp(a, 5)
    for i in range(8):
        for pl, Wd in ((0, WR), (1, WI)):
            src = WP + 4 * pl + (i >> 1)
            if i & 1:
                a('v_and_b32 v%d, 0xffff0000, v%d' % (Wd + i, src))
            else:
                a('v_lshlrev_b32 v%d, 16, v%d' % (Wd + i, src))
        a('v_mul_f32 v%d, s12, v%d' % (WR + i, WR + i))
        a('v_mul_f32 v%d, s12, v%d' % (WI + i, WI + i))
    a.nop(4)
    for i in range(8):
        xr, xi = ACC + i, ACC + 8 + i
        a('v_mul_f32 v%d, v%d, v%d' % (T0 + i, xr, WR + i))
        a('v_mul_f32 v%d, v%d, v%d' % (T0 + 8 + i, xr, WI + i))
        a('v_fma_f32 v%d, -v%d, v%d, v%d' % (T0 + i, xi, WI + i, T0 + i))
        a('v_fma_f32 v%d, v%d, v%d, v%d' % (T0 + 8 + i, xi, WR + i, T0 + 8 + i))
    pack()
    zero_acc()
    a.nop(2)
    for mt in range(2):
        mf(TR(mt), C2 + 4 * mt, BR)
        mf(TI(mt), C2 + 4 * mt, BI)
        mf(TR(mt), NS2 + 4 * mt, BI)
        mf(TI(mt), S2 + 4 * mt, BR)
    a.nop(10)
    twiddle(True)
    pack()
    a('v_lshlrev_b32 v12, 6, v4')
    a('v_lshl_add_u32 v12, v5, 3, v12')
    for mt in range(2):
        a('ds_write_b64 v12, %s offset:%d' % (vr(BR + 2 * mt, 2), 8192 + 32 * mt))
        a('ds_write_b64 v12, %s offset:%d' % (vr(BI + 2 * mt, 2), 8192 + 4096 + 32 * mt))
    zero_acc()
    a('s_waitcnt lgkmcnt(0)')
    a('s_barrier')
    stamp(a, 6)
    read_frags(11, 8)
    for mt in range(2):
        for ks in range(2):
            zr, zi = ZR + 8 * mt + 4 * ks, ZI + 8 * mt + 4 * ks
            mf(TR(mt), zr, C1 + 4 * ks)
            mf(TI(mt), zi, C1 + 4 * ks)
            mf(TR(mt), zi, NS1 + 4 * ks)
            mf(TI(mt), zr, S1 + 4 * ks)
    a.nop(10)
    for q in range(4):
        a('v_cvt_pk_bf16_f32 v%d, v%d, v%d' % (BR + q, ACC + 2 * q, ACC + 2 * q + 1))
        a('v_cvt_pk_bf16_f32 v%d, v%d, v%d' % (BI + q, ACC + 8 + 2 * q, ACC + 8 + 2 * q + 1))
    a('v_lshlrev_b32 v12, 6, v4')
    a('v_lshl_add_u32 v12, v5, 4, v12')
    a('s_cmp_eq_u32 s2, 224')
    a('s_cselect_b32 s4, 4096, s4')
    a('buffer_store_dwordx4 %s, v12, s[40:43], s4 offen' % vr(BR, 4))
    a('s_cbranch_scc1 L_k2_noim')
    a('s_cmp_eq_u32 s2, 0')
    a('s_cbranch_scc1 L_k2_noim')
    a('buffer_store_dwordx4 %s, v12, s[40:43], s5 offen' % vr(BI, 4))
    a.label('L_k2_noim')
    stamp(a, 7)
    a('s_waitcnt vmcnt(0)') if STAMPS else None
    stamp(a, 8)
    dump_stamps(a, 9, 100, 'k2')
    a.label('L_k2_end')
    a('s_endpgm')
    return a.text(), 184, 16384
```

```python
from asmlib import *
from k0 import *
import os

def gen_k3():
    a = Asm()
    NS = int(os.environ.get('K3NS', '6'))
    NH = 28
    NY = 7
    NC = NH + NY
    a('s_cmp_ge_u32 s2, 224')
    a('s_cbranch_scc1 L_k3_end')
    stamp(a, 0)
    load_ptrs(a)
    a('v_lshrrev_b32 v1, 6, v0')
    a('v_and_b32 v2, 63, v0')
    a('v_readfirstlane_b32 s3, v1')
    a('s_and_b32 s4, s2, 7')
    a('s_lshr_b32 s5, s2, 3')
    a('s_and_b32 s6, s5, 3')
    a('s_lshl_b32 s4, s4, 2')
    a('s_add_u32 s4, s4, s6')
    a('s_lshr_b32 s5, s5, 2')
    a('s_lshl_b32 s10, s5, 7')
    a('s_cmp_lt_u32 s3, 4')
    a('s_cbranch_scc1 L_k3_cons')
    a('s_sub_u32 s3, s3, 4')
    a('v_subrev_u32 v1, 4, v1')
    a('v_lshrrev_b32 v3, 3, v2')
    a('v_lshl_add_u32 v3, v1, 4, v3')
    a('v_and_b32 v4, 7, v2')
    a('v_bfe_u32 v5, v2, 4, 1')
    a('v_lshlrev_b32 v5, 2, v5')
    a('v_xor_b32 v5, v4, v5')
    a('v_mul_u32_u24 v6, 896, v3')
    a('v_lshl_add_u32 v6, v5, 4, v6')
    a('v_add_u32 v7, 7168, v6')
    a('v_lshlrev_b32 v8, 12, v3')
    a('v_lshl_add_u32 v8, v5, 4, v8')
    a('v_add_u32 v9, 32768, v8')
    a('v_lshrrev_b32 v10, 4, v2')
    a('v_xor_b32 v11, v4, v10')
    a('v_mul_u32_u24 v12, 3584, v3')
    a('v_lshl_add_u32 v10, v11, 4, v12')
    a('v_xor_b32 v11, 4, v11')
    a('v_lshl_add_u32 v11, v11, 4, v12')
    a('v_add_u32 v11, %d, v11' % (8 * 3584))
    a('s_mul_i32 s11, s4, %d' % (64 * 3584))
    a('s_lshl_b32 s12, s4, 7')
    a('s_lshl_b32 s13, s3, 11')
    a('s_waitcnt lgkmcnt(0)')
    a.srd(40, 28, 29, 1792 * 896)
    a.srd(44, 34, 35, H_BYTES, H_OFF)
    a.srd(48, 34, 35, 448 * 4096, YT_OFF)
    a.srd(52, 34, 35, 448 * 896, G_OFF)
    def issue(c):
        slot = (c % NS) * 16384
        if c < NH:
            sw, sh = 40, 44
            a('s_add_u32 s14, s10, %d' % (c * 64 * 896))
            a('s_add_u32 s15, s11, %d' % (c * 128))
            vb = (10, 11)
        else:
            sw, sh = 52, 48
            cc = c - NH
            a('s_add_u32 s14, s10, %d' % (cc * 64 * 896))
            a('s_add_u32 s15, s12, %d' % (cc * 64 * 4096))
            vb = (8, 9)
        for q in range(2):
            a('s_add_u32 s60, s13, %d' % (slot + q * 1024))
            a('s_mov_b32 m0, s60')
            a('s_add_u32 s60, s60, 8192')
            a('buffer_load_dwordx4 v%d, s[%d:%d], s14 offen lds' % (6 + q, sw, sw + 3))
            a('s_mov_b32 m0, s60')
            a.nop(1)
            a('buffer_load_dwordx4 v%d, s[%d:%d], s15 offen lds' % (vb[q], sh, sh + 3))
    for c in range(NS - 1):
        issue(c)
    for c in range(NC):
        later = min(NS - 2, NC - 1 - c)
        a('s_waitcnt vmcnt(%d)' % (4 * later))
        a('s_barrier')
        if c + NS - 1 < NC:
            issue(c + NS - 1)
    a('s_endpgm')
    a.label('L_k3_cons')
    a('s_lshr_b32 s6, s3, 1')
    a('s_and_b32 s7, s3, 1')
    a('v_and_b32 v12, 31, v2')
    a('s_lshl_b32 s8, s6, 5')
    a('v_add_u32 v12, s8, v12')
    a('v_lshrrev_b32 v13, 5, v2')
    a('v_mul_u32_u24 v14, 896, v12')
    a('v_lshl_add_u32 v14, v13, 5, v14')
    a('s_lshl_b32 s8, s7, 6')
    a('v_add_u32 v14, s8, v14')
    a('s_mul_i32 s9, s4, %d' % (64 * 896))
    a('s_add_u32 s9, s9, s10')
    a('s_waitcnt lgkmcnt(0)')
    a.srd(36, 16, 17, XN_BYTES)
    a.srd(56, 30, 31, XN_BYTES)
    XR = 24
    a('buffer_load_dwordx4 %s, v14, s[36:39], s9 offen' % vr(XR, 4))
    a('buffer_load_dwordx4 %s, v14, s[36:39], s9 offen offset:16' % vr(XR + 4, 4))
    stamp(a, 1)
    a('v_lshrrev_b32 v3, 4, v2')
    a('v_and_b32 v4, 15, v2')
    a('v_lshrrev_b32 v5, 2, v4')
    a('v_and_b32 v4, 3, v4')
    a('v_lshrrev_b32 v15, 1, v3')
    a('v_lshl_add_u32 v15, v15, 3, v5')
    a('v_lshlrev_b32 v15, 7, v15')
    a('v_lshrrev_b32 v16, 1, v5')
    a('v_lshlrev_b32 v16, 2, v16')
    a('v_and_b32 v17, 1, v4')
    a('v_lshlrev_b32 v17, 1, v17')
    a('v_and_b32 v18, 1, v3')
    a('v_add_u32 v17, v17, v18')
    a('s_lshl_b32 s8, s7, 2')
    a('v_add_u32 v17, s8, v17')
    a('v_xor_b32 v17, v17, v16')
    a('v_lshl_add_u32 v17, v17, 4, v15')
    a('v_lshrrev_b32 v18, 1, v4')
    a('v_lshl_add_u32 v17, v18, 3, v17')
    a('v_and_b32 v18, 1, v3')
    a('v_lshlrev_b32 v18, 1, v18')
    a('v_lshrrev_b32 v19, 1, v4')
    a('v_add_u32 v18, v18, v19')
    a('s_lshl_b32 s8, s6, 2')
    a('v_add_u32 v18, s8, v18')
    a('v_xor_b32 v18, v18, v16')
    a('v_lshl_add_u32 v18, v18, 4, v15')
    a('v_and_b32 v19, 1, v4')
    a('v_lshl_add_u32 v18, v19, 3, v18')
    a('v_add_u32 v18, 8192, v18')
    a('v_bfe_u32 v19, v12, 1, 3')
    for ks in range(4):
        a('v_add_u32 v%d, %d, v13' % (20 + ks, 2 * ks))
        a('v_xor_b32 v%d, v%d, v19' % (20 + ks, 20 + ks))
        a('v_lshlrev_b32 v%d, 4, v%d' % (20 + ks, 20 + ks))
        a('v_lshl_add_u32 v%d, v12, 7, v%d' % (20 + ks, 20 + ks))
        a('v_add_u32 v%d, 8192, v%d' % (20 + ks, 20 + ks))
    a('v_add_u32 v48, 0x10000, v17')
    a('v_add_u32 v49, 0x10000, v18')
    for ks in range(4):
        a('v_add_u32 v%d, 0x10000, v%d' % (50 + ks, 20 + ks))
    ACCB, ACCA = 64, 80
    for i in range(32):
        a('v_mov_b32 v%d, 0' % (ACCB + i))
    FA = [32, 40]
    def rd(c, ks, buf):
        slot = (c % NS) * 16384
        hiset = slot >= 65536
        slot &= 65535
        va, vy, vh = (48, 49, 50) if hiset else (17, 18, 20)
        for h in range(2):
            a('ds_read_b64_tr_b16 %s, v%d offset:%d' % (vr(buf + 2 * h, 2), va, slot + ks * 2048 + h * 512))
        if c < NH:
            a('ds_read_b128 %s, v%d offset:%d' % (vr(buf + 4, 4), vh + ks, slot))
            return 3
        for h in range(2):
            a('ds_read_b64_tr_b16 %s, v%d offset:%d' % (vr(buf + 4 + 2 * h, 2), vy, slot + ks * 2048 + h * 512))
        return 4
    a('s_barrier')
    rd(0, 0, FA[0])
    for c in range(NC):
        if c % 4 == 0: stamp(a, 2 + c // 4)
        acc = ACCB if c < NH else ACCA
        for ks in range(4):
            cur = FA[ks & 1]
            if ks < 3:
                n = rd(c, ks + 1, FA[(ks + 1) & 1])
                a('s_waitcnt lgkmcnt(%d)' % n)
            else:
                a('s_waitcnt lgkmcnt(0)')
                if c + 1 < NC:
                    a('s_barrier')
                    rd(c + 1, 0, FA[0])
            a('v_mfma_f32_32x32x16_bf16 %s, %s, %s, %s' % (vr(acc, 16), vr(cur, 4), vr(cur + 4, 4), vr(acc, 16)))
    a.nop(14)
    stamp(a, 11)
    a('s_waitcnt vmcnt(0)')
    T = 32
    for p in range(8):
        a0, a1 = ACCA + 2 * p, ACCA + 2 * p + 1
        b0, b1 = ACCB + 2 * p, ACCB + 2 * p + 1
        a('v_cvt_pk_bf16_f32 v%d, v%d, v%d' % (T, a0, a1))
        a('v_cvt_pk_bf16_f32 v%d, v%d, v%d' % (T + 1, b0, b1))
        a('v_lshlrev_b32 v%d, 16, v%d' % (a0, T))
        a('v_and_b32 v%d, 0xffff0000, v%d' % (a1, T))
        a('v_lshlrev_b32 v%d, 16, v%d' % (b0, T + 1))
        a('v_and_b32 v%d, 0xffff0000, v%d' % (b1, T + 1))
        a('v_lshlrev_b32 v%d, 16, v%d' % (T + 2, XR + p))
        a('v_and_b32 v%d, 0xffff0000, v%d' % (T + 3, XR + p))
        a('v_add_f32 v%d, v%d, v%d' % (T + 2, T + 2, a0))
        a('v_add_f32 v%d, v%d, v%d' % (T + 3, T + 3, a1))
        a('v_cvt_pk_bf16_f32 v%d, v%d, v%d' % (T, T + 2, T + 3))
        a('v_lshlrev_b32 v%d, 16, v%d' % (T + 2, T))
        a('v_and_b32 v%d, 0xffff0000, v%d' % (T + 3, T))
        a('v_add_f32 v%d, v%d, v%d' % (T + 2, T + 2, b0))
        a('v_add_f32 v%d, v%d, v%d' % (T + 3, T + 3, b1))
        a('v_cvt_pk_bf16_f32 v%d, v%d, v%d' % (40 + p, T + 2, T + 3))
    a('buffer_store_dwordx4 v[40:43], v14, s[56:59], s9 offen')
    a('buffer_store_dwordx4 v[44:47], v14, s[56:59], s9 offen offset:16')
    stamp(a, 12)
    a('s_waitcnt vmcnt(0)') if STAMPS else None
    stamp(a, 13)
    dump_stamps(a, 14, 100, 'k3')
    a.label('L_k3_end')
    a('s_endpgm')
    return a.text(), 96, NS * 16384
```

```python
import sys, os
import asmlib
asmlib.STAMPS = bool(os.environ.get('STAMPS'))
from asmlib import *
import k0, k1, k2, k3

HEADER = open('parallel_sum__spectral_gfnet__glu_gated_geglu__prompt.s.ref').read().split('; Override launch')[0]

def build(kernels, path):
    s = HEADER
    for name, body, vg, grid, block, lds in kernels:
        s += '; @launch kernel=%s grid=(%d,1,1) block=(%d,1,1) lds=%d\n' % (name, grid, block, lds)
    s += '.amdgcn_target "amdgcn-amd-amdhsa--gfx950"\n.text\n'
    seen = set()
    for name, body, vg, grid, block, lds in kernels:
        if name in seen: continue
        seen.add(name)
        s += kernel_header(name) + body
    s += '.section .rodata,"a"\n'
    seen = set()
    for name, body, vg, grid, block, lds in kernels:
        if name in seen: continue
        seen.add(name)
        s += '.p2align 6\n' + kernel_desc(name, vg)
    open(path, 'w').write(s)

if __name__ == '__main__':
    ks = []
    b, vg, lds = k0.gen_k0()
    ks.append(('k0_kernel', b, vg, 256, 256, lds))
    b, vg, lds = k2.gen_k2()
    ks.append(('k2_kernel', b, vg, 225, 256, lds))
    b, vg, lds = k1.gen_k1()
    ks.append(('k1_kernel', b, vg, 224, 512, lds))
    b, vg, lds = k3.gen_k3()
    ks.append(('k3_kernel', b, vg, 224, 512, lds))
    build(ks, sys.argv[1] if len(sys.argv) > 1 else 'cur.s')
```

```python
import struct, math

def f32bits(x):
    return struct.unpack('<I', struct.pack('<f', x))[0]

class Asm:
    def __init__(self):
        self.lines = []
    def __call__(self, s):
        for ln in s.strip('\n').split('\n'):
            ln = ln.strip()
            if ln:
                self.lines.append('    ' + ln)
    def label(self, l):
        self.lines.append(l + ':')
    def c(self, s):
        self.lines.append('    ; ' + s)
    def nop(self, n):
        while n > 0:
            k = min(n, 16)
            self.lines.append('    s_nop %d' % (k - 1))
            n -= k
    def text(self):
        return '\n'.join(self.lines) + '\n'

    def srd(self, d, base_lo, base_hi, nbytes, off=0):
        if off:
            self('s_add_u32 s%d, s%d, 0x%x' % (d, base_lo, off))
            self('s_addc_u32 s%d, s%d, 0' % (d + 1, base_hi))
        else:
            self('s_mov_b32 s%d, s%d' % (d, base_lo))
            self('s_mov_b32 s%d, s%d' % (d + 1, base_hi))
        self('s_mov_b32 s%d, 0x%x' % (d + 2, nbytes))
        self('s_mov_b32 s%d, 0x00020000' % (d + 3))

def vr(a, n):
    return 'v[%d:%d]' % (a, a + n - 1)

def kernel_header(name):
    return '.globl %s\n.p2align 8\n.type %s,@function\n%s:\n' % (name, name, name)

def kernel_desc(name, vgpr, sgpr=102):
    acc = (vgpr + 3) // 4 * 4
    return ('.amdhsa_kernel %s\n'
            '  .amdhsa_next_free_vgpr %d\n'
            '  .amdhsa_next_free_sgpr %d\n'
            '  .amdhsa_accum_offset %d\n'
            '  .amdhsa_group_segment_fixed_size 0\n'
            '  .amdhsa_kernarg_size 80\n'
            '  .amdhsa_user_sgpr_count 2\n'
            '  .amdhsa_user_sgpr_kernarg_segment_ptr 1\n'
            '  .amdhsa_system_sgpr_workgroup_id_x 1\n'
            '.end_amdhsa_kernel\n') % (name, vgpr, sgpr, acc)

STAMPS = False
def stamp(a, idx):
    if not STAMPS: return
    a('s_memtime s[%d:%d]' % (74 + 2 * idx, 75 + 2 * idx))
    a('s_waitcnt lgkmcnt(0)')

def dump_stamps(a, n, wg=0, lbl='x'):
    if not STAMPS: return
    a('s_cmp_lg_u32 s2, %d' % wg)
    a('s_cbranch_scc1 L_nostamp_%s' % lbl)
    a('v_cmp_gt_u32 vcc, 1, v0')
    a('s_and_saveexec_b64 s[62:63], vcc')
    a('s_cbranch_execz L_nostamp2_%s' % lbl)
    a('s_mov_b32 s40, s32')
    a('s_mov_b32 s41, s33')
    a('s_mov_b32 s42, 256')
    a('s_mov_b32 s43, 0x00020000')
    a('v_mov_b32 v1, 0')
    for i in range(n):
        a('v_mov_b32 v2, s%d' % (74 + 2 * i))
        a('v_mov_b32 v3, s%d' % (75 + 2 * i))
        a('buffer_store_dwordx2 v[2:3], v1, s[40:43], 0 offen offset:%d' % (8 * i))
        a.nop(2)
    a.label('L_nostamp2_%s' % lbl)
    a('s_mov_b64 exec, s[62:63]')
    a.label('L_nostamp_%s' % lbl)
```

```python
from asmlib import *
from k0 import *

def cs(a, dc, ds, idx, sc, tmp):
    a('v_cvt_f32_u32 v%d, v%d' % (tmp, idx))
    a('v_mul_f32 v%d, s%d, v%d' % (tmp, sc, tmp))
    a('v_cos_f32 v%d, v%d' % (dc, tmp))
    a('v_sin_f32 v%d, v%d' % (ds, tmp))

SF_ZT, SF_YT, SF_WT = 52, 56, 60
S_F8, S_F8B, S_W1K, S_T, S_I64, S_I32, S_I2K = 64, 65, 66, 67, 68, 69, 70

def fft_issue(a, LB, sw, sf):
    a('v_and_b32 v6, 15, v0')
    a('v_bfe_u32 v1, v0, 6, 2')
    a('v_lshl_add_u32 v4, v1, 4, v6')
    a('v_bfe_u32 v5, v0, 4, 2')
    a('v_lshlrev_b32 v2, 4, v0')
    a('s_lshl_b32 s%d, s%d, 13' % (S_F8, sf))
    a('s_add_u32 s%d, s%d, 4096' % (S_F8B, S_F8))
    a('s_lshl_b32 s%d, s%d, 10' % (S_W1K, sw))
    a('s_add_u32 s%d, s%d, %d' % (S_W1K, S_W1K, LB))
    a.srd(SF_ZT, 34, 35, ZT_BYTES, ZT_OFF)
    a.srd(SF_YT, 34, 35, YT_BYTES, YT_OFF)
    a.srd(SF_WT, 34, 35, WT_BYTES, WT_OFF)
    a('s_mov_b32 m0, s%d' % S_W1K)
    a('s_add_u32 s%d, s%d, 4096' % (S_T, S_W1K))
    a('buffer_load_dwordx4 v2, s[%d:%d], s%d offen lds' % (SF_ZT, SF_ZT + 3, S_F8))
    a('s_mov_b32 m0, s%d' % S_T)
    a('v_lshlrev_b32 v3, 6, v4')
    a('buffer_load_dwordx4 v2, s[%d:%d], s%d offen lds' % (SF_ZT, SF_ZT + 3, S_F8B))
    a('v_lshl_add_u32 v3, v5, 3, v3')
    WP = 176
    for pl in range(2):
        for mt in range(2):
            a('buffer_load_dwordx2 %s, v3, s[%d:%d], s%d offen offset:%d' % (vr(WP + 4 * pl + 2 * mt, 2), SF_WT, SF_WT + 3, S_F8 + pl, 32 * mt))

def fft_compute(a, LB, sf, n_after_z, n_after_w, lbl):
    WR, WI, WP = 80, 88, 176
    a('s_mov_b32 s%d, 0x%x' % (S_I64, f32bits(1.0 / 64)))
    a('s_mov_b32 s%d, 0x%x' % (S_I32, f32bits(1.0 / 32)))
    a('s_mov_b32 s%d, 0x%x' % (S_I2K, f32bits(1.0 / 2048)))
    C1, S1, NS1 = 16, 24, 32
    C2, S2, NS2 = 40, 48, 56
    TWC, TWS = 64, 72
    T0 = 152
    a('v_lshlrev_b32 v7, 3, v5')
    for ks in range(2):
        for j in range(8):
            a('v_add_u32 v%d, %d, v7' % (T0, 32 * ks + j))
            a('v_mul_u32_u24 v%d, v%d, v4' % (T0, T0))
            a('v_and_b32 v%d, 63, v%d' % (T0, T0))
            cs(a, T0 + 2 + j, T0 + 10 + j, T0, S_I64, T0 + 1)
        a.nop(1)
        for q in range(4):
            a('v_cvt_pk_bf16_f32 v%d, v%d, v%d' % (C1 + 4 * ks + q, T0 + 2 + 2 * q, T0 + 3 + 2 * q))
            a('v_cvt_pk_bf16_f32 v%d, v%d, v%d' % (S1 + 4 * ks + q, T0 + 10 + 2 * q, T0 + 11 + 2 * q))
            a('v_cvt_pk_bf16_f32 v%d, -v%d, -v%d' % (NS1 + 4 * ks + q, T0 + 10 + 2 * q, T0 + 11 + 2 * q))
    a('v_lshlrev_b32 v7, 2, v5')
    for mt in range(2):
        a('v_add_u32 v8, %d, v6' % (16 * mt))
        for j in range(8):
            off = j if j < 4 else 16 + j - 4
            a('v_add_u32 v%d, %d, v7' % (T0, off))
            a('v_mul_u32_u24 v%d, v%d, v8' % (T0, T0))
            a('v_and_b32 v%d, 31, v%d' % (T0, T0))
            cs(a, T0 + 2 + j, T0 + 10 + j, T0, S_I32, T0 + 1)
        a.nop(1)
        for q in range(4):
            a('v_cvt_pk_bf16_f32 v%d, v%d, v%d' % (C2 + 4 * mt + q, T0 + 2 + 2 * q, T0 + 3 + 2 * q))
            a('v_cvt_pk_bf16_f32 v%d, v%d, v%d' % (S2 + 4 * mt + q, T0 + 10 + 2 * q, T0 + 11 + 2 * q))
            a('v_cvt_pk_bf16_f32 v%d, -v%d, -v%d' % (NS2 + 4 * mt + q, T0 + 10 + 2 * q, T0 + 11 + 2 * q))
    for mt in range(2):
        for r in range(4):
            i = 4 * mt + r
            a('v_add_u32 v%d, %d, v7' % (T0, 16 * mt + r))
            a('v_mul_u32_u24 v%d, v%d, v4' % (T0, T0))
            cs(a, TWC + i, TWS + i, T0, S_I2K, T0 + 1)
    a('v_lshrrev_b32 v8, 2, v6')
    a('v_and_b32 v9, 3, v6')
    a('v_lshl_add_u32 v8, v5, 3, v8')
    a('v_lshlrev_b32 v8, 6, v8')
    a('v_add_u32 v8, %d, v8' % LB)
    a('v_lshl_add_u32 v10, v9, 3, v8')
    a('v_lshl_add_u32 v11, v9, 4, v8')
    a('v_add_u32 v11, 8192, v11')
    ZR, ZI = 96, 112
    ACC = 128
    def TR(mt): return ACC + 4 * mt
    def TI(mt): return ACC + 8 + 4 * mt
    BR, BI = 144, 148
    def zero_acc():
        for i in range(16):
            a('v_mov_b32 v%d, 0' % (ACC + i))
    zero_acc()
    a('s_waitcnt vmcnt(%d)' % n_after_z)
    a('s_barrier')
    def read_frags(base, mtstep):
        for pl, Z in ((0, ZR), (1, ZI)):
            for mt in range(2):
                for ks in range(2):
                    for h in range(2):
                        d = Z + 8 * mt + 4 * ks + 2 * h
                        a('ds_read_b64_tr_b16 %s, v%d offset:%d' % (vr(d, 2), base, pl * 4096 + ks * 2048 + h * 256 + mt * mtstep))
        a('s_waitcnt lgkmcnt(0)')
    def mf(d, x, y):
        a('v_mfma_f32_16x16x32_bf16 %s, %s, %s, %s' % (vr(d, 4), vr(x, 4), vr(y, 4), vr(d, 4)))
    read_frags(10, 32)
    for mt in range(2):
        for ks in range(2):
            zr, zi = ZR + 8 * mt + 4 * ks, ZI + 8 * mt + 4 * ks
            mf(TR(mt), zr, C1 + 4 * ks)
            mf(TI(mt), zi, C1 + 4 * ks)
            mf(TR(mt), zi, S1 + 4 * ks)
            mf(TI(mt), zr, NS1 + 4 * ks)
    a.nop(10)
    def twiddle(conj):
        for i in range(8):
            tr_, ti_ = ACC + i, ACC + 8 + i
            a('v_mul_f32 v%d, v%d, v%d' % (T0 + i, tr_, TWC + i))
            a('v_mul_f32 v%d, v%d, v%d' % (T0 + 8 + i, ti_, TWC + i))
            if not conj:
                a('v_fma_f32 v%d, v%d, v%d, v%d' % (T0 + i, ti_, TWS + i, T0 + i))
                a('v_fma_f32 v%d, -v%d, v%d, v%d' % (T0 + 8 + i, tr_, TWS + i, T0 + 8 + i))
            else:
                a('v_fma_f32 v%d, -v%d, v%d, v%d' % (T0 + i, ti_, TWS + i, T0 + i))
                a('v_fma_f32 v%d, v%d, v%d, v%d' % (T0 + 8 + i, tr_, TWS + i, T0 + 8 + i))
    def pack():
        for q in range(4):
            a('v_cvt_pk_bf16_f32 v%d, v%d, v%d' % (BR + q, T0 + 2 * q, T0 + 2 * q + 1))
            a('v_cvt_pk_bf16_f32 v%d, v%d, v%d' % (BI + q, T0 + 8 + 2 * q, T0 + 8 + 2 * q + 1))
    twiddle(False)
    pack()
    zero_acc()
    a.nop(2)
    for mt in range(2):
        mf(TR(mt), C2 + 4 * mt, BR)
        mf(TI(mt), C2 + 4 * mt, BI)
        mf(TR(mt), S2 + 4 * mt, BI)
        mf(TI(mt), NS2 + 4 * mt, BR)
    a('s_waitcnt vmcnt(%d)' % n_after_w)
    for i in range(8):
        for pl, Wd in ((0, WR), (1, WI)):
            src = WP + 4 * pl + (i >> 1)
            if i & 1:
                a('v_and_b32 v%d, 0xffff0000, v%d' % (Wd + i, src))
            else:
                a('v_lshlrev_b32 v%d, 16, v%d' % (Wd + i, src))
        a('v_mul_f32 v%d, s%d, v%d' % (WR + i, S_I2K, WR + i))
        a('v_mul_f32 v%d, s%d, v%d' % (WI + i, S_I2K, WI + i))
    a.nop(4)
    for i in range(8):
        xr, xi = ACC + i, ACC + 8 + i
        a('v_mul_f32 v%d, v%d, v%d' % (T0 + i, xr, WR + i))
        a('v_mul_f32 v%d, v%d, v%d' % (T0 + 8 + i, xr, WI + i))
        a('v_fma_f32 v%d, -v%d, v%d, v%d' % (T0 + i, xi, WI + i, T0 + i))
        a('v_fma_f32 v%d, v%d, v%d, v%d' % (T0 + 8 + i, xi, WR + i, T0 + 8 + i))
    pack()
    zero_acc()
    a.nop(2)
    for mt in range(2):
        mf(TR(mt), C2 + 4 * mt, BR)
        mf(TI(mt), C2 + 4 * mt, BI)
        mf(TR(mt), NS2 + 4 * mt, BI)
        mf(TI(mt), S2 + 4 * mt, BR)
    a.nop(10)
    twiddle(True)
    pack()
    a('v_lshlrev_b32 v12, 6, v4')
    a('v_lshl_add_u32 v12, v5, 3, v12')
    a('v_add_u32 v12, %d, v12' % LB)
    for mt in range(2):
        a('ds_write_b64 v12, %s offset:%d' % (vr(BR + 2 * mt, 2), 8192 + 32 * mt))
        a('ds_write_b64 v12, %s offset:%d' % (vr(BI + 2 * mt, 2), 8192 + 4096 + 32 * mt))
    zero_acc()
    a('s_waitcnt lgkmcnt(0)')
    a('s_barrier')
    read_frags(11, 8)
    for mt in range(2):
        for ks in range(2):
            zr, zi = ZR + 8 * mt + 4 * ks, ZI + 8 * mt + 4 * ks
            mf(TR(mt), zr, C1 + 4 * ks)
            mf(TI(mt), zi, C1 + 4 * ks)
            mf(TR(mt), zi, NS1 + 4 * ks)
            mf(TI(mt), zr, S1 + 4 * ks)
    a.nop(10)
    for q in range(4):
        a('v_cvt_pk_bf16_f32 v%d, v%d, v%d' % (BR + q, ACC + 2 * q, ACC + 2 * q + 1))
        a('v_cvt_pk_bf16_f32 v%d, v%d, v%d' % (BI + q, ACC + 8 + 2 * q, ACC + 8 + 2 * q + 1))
    a('v_lshlrev_b32 v12, 6, v4')
    a('v_lshl_add_u32 v12, v5, 4, v12')
    a('s_cmp_eq_u32 s%d, 224' % sf)
    a('s_cselect_b32 s%d, 4096, s%d' % (S_F8, S_F8))
    a('s_cselect_b32 s%d, 0x7ff00000, s%d' % (S_F8B, S_F8B))
    a('s_cmp_eq_u32 s%d, 0' % sf)
    a('s_cselect_b32 s%d, 0x7ff00000, s%d' % (S_F8B, S_F8B))
    a('buffer_store_dwordx4 %s, v12, s[%d:%d], s%d offen' % (vr(BR, 4), SF_YT, SF_YT + 3, S_F8))
    a('buffer_store_dwordx4 %s, v12, s[%d:%d], s%d offen' % (vr(BI, 4), SF_YT, SF_YT + 3, S_F8B))
    a.nop(2)
```

```python
from asmlib import *

import os
PREFETCH = int(os.environ.get('PREFETCH', '1'))
XN_OFF = 0
ZT_OFF = 2 << 20
YT_OFF = 4 << 20
G_OFF = 6 << 20
H_OFF = 8 << 20
XN_BYTES = 2048 * 448 * 2
ZT_BYTES = 256 * 2 * 2048 * 2
YT_BYTES = 225 * 2 * 2048 * 2
G_ROWS = 480
G_BYTES = G_ROWS * 896
H_BYTES = 2048 * 1792 * 2
WT_OFF = 16 << 20
WT_BYTES = 225 * 2 * 4096

def load_ptrs(a):
    a('s_load_dwordx16 s[16:31], s[0:1], 0')
    a('s_load_dwordx4 s[32:35], s[0:1], 64')

def mod448(a, p, t1, out):
    a('v_lshrrev_b32 v%d, 6, v%d' % (t1, p))
    a('v_mul_u32_u24 v%d, 9363, v%d' % (t1, t1))
    a('v_lshrrev_b32 v%d, 16, v%d' % (t1, t1))
    a('v_mul_u32_u24 v%d, 448, v%d' % (t1, t1))
    a('v_sub_u32 v%d, v%d, v%d' % (out, p, t1))

def gen_k0():
    a = Asm()
    PITCH = 928
    a('s_cmp_ge_u32 s2, 256')
    a('s_cbranch_scc1 L_k0_end')
    stamp(a, 0)
    load_ptrs(a)
    a('s_lshr_b32 s3, s2, 2')
    a('s_and_b32 s4, s2, 3')
    a('v_lshrrev_b32 v1, 3, v0')
    a('v_and_b32 v2, 7, v0')
    a('v_mul_u32_u24 v3, 896, v1')
    a('v_lshl_add_u32 v3, v2, 4, v3')
    a('s_mul_i32 s5, s3, 28672')
    a('s_waitcnt lgkmcnt(0)')
    a.srd(36, 16, 17, XN_BYTES)
    a.srd(40, 34, 35, XN_BYTES, XN_OFF)
    a.srd(44, 34, 35, ZT_BYTES, ZT_OFF)
    a.srd(48, 34, 35, G_BYTES, G_OFF)
    for i in range(7):
        a('buffer_load_dwordx4 %s, v3, s[36:39], s5 offen offset:%d' % (vr(8 + 4 * i, 4), 128 * i))
    a.srd(52, 18, 19, 2048 * 225 * 2)
    a.srd(56, 20, 21, 2048 * 225 * 2)
    a.srd(60, 34, 35, WT_BYTES, WT_OFF)
    a('s_lshl_b32 s8, s4, 3')
    a('s_lshl_b32 s8, s8, 6')
    a('s_add_u32 s8, s8, s3')
    a('s_mul_i32 s8, s8, 450')
    a('v_lshlrev_b32 v36, 1, v0')
    for e in range(8):
        for pl in range(2):
            a('s_add_u32 s9, s8, %d' % (e * 64 * 450))
            a('buffer_load_ushort v%d, v36, s[%d:%d], s9 offen' % (212 + 8 * pl + e, 52 + 4 * pl, 55 + 4 * pl))
    if PREFETCH:
        a('s_lshl_b32 s9, s2, 12')
        a('v_lshl_add_u32 v37, v0, 4, s9')
        a('s_mov_b32 s9, 0x100000')
        PS = [64, 68, 12]
        for m in range(3):
            a.srd(PS[m], 24 + 2 * m, 25 + 2 * m, 448 * 3584)
        for m in (2, 0, 1):
            a('buffer_load_dwordx4 %s, v37, s[%d:%d], 0 offen' % (vr(236 + 4 * m, 4), PS[m], PS[m] + 3))
            a('buffer_load_dwordx4 %s, v37, s[%d:%d], s9 offen' % (vr(248 + 4 * (m & 1), 4), PS[m], PS[m] + 3))
    a('v_and_b32 v4, 15, v0')
    a('v_lshrrev_b32 v5, 6, v0')
    a('v_lshl_add_u32 v4, v5, 4, v4')
    a('s_lshl_b32 s6, s4, 6')
    a('v_add_u32 v4, s6, v4')
    a('v_bfe_u32 v5, v0, 4, 2')
    a('v_lshlrev_b32 v5, 3, v5')
    inv448 = f32bits(1.0 / 448.0)
    a('s_mov_b32 s7, 0x%x' % inv448)
    a('v_cvt_f32_u32 v6, v4')
    a('v_mul_f32 v6, s7, v6')
    a('v_sin_f32 v7, v6')
    a('v_cos_f32 v6, v6')
    BF = 100
    C0, S0 = 44, 52
    for t in range(14):
        a('v_add_u32 v40, %d, v5' % (32 * t))
        a('v_mul_u32_u24 v41, v40, v4')
        mod448(a, 41, 42, 43)
        a('v_cvt_f32_u32 v43, v43')
        a('v_mul_f32 v43, s7, v43')
        a('v_cos_f32 v%d, v43' % C0)
        a('v_sin_f32 v%d, v43' % S0)
        a.nop(1)
        for j in range(7):
            a('v_mul_f32 v40, v%d, v7' % (S0 + j))
            a('v_mul_f32 v41, v%d, v7' % (C0 + j))
            a('v_fma_f32 v%d, v%d, v6, -v40' % (C0 + j + 1, C0 + j))
            a('v_fma_f32 v%d, v%d, v6, v41' % (S0 + j + 1, S0 + j))
        for q in range(4):
            a('v_cvt_pk_bf16_f32 v%d, v%d, v%d' % (BF + 8 * t + q, C0 + 2 * q, C0 + 2 * q + 1))
            a('v_cvt_pk_bf16_f32 v%d, -v%d, -v%d' % (BF + 8 * t + 4 + q, S0 + 2 * q, S0 + 2 * q + 1))
    stamp(a, 1)
    a('s_cmp_ge_u32 s2, 224')
    a('s_cbranch_scc1 L_k0_nog')
    a('s_mov_b32 s8, 0x%x' % f32bits(2.0 / 448.0))
    a('s_cmp_eq_u32 s2, 0')
    a('s_cselect_b32 s8, 0x%x, s8' % inv448)
    a('s_cmp_eq_u32 s2, 224')
    a('s_cselect_b32 s8, 0x%x, s8' % inv448)
    a('s_cmp_gt_u32 s2, 224')
    a('s_cselect_b32 s8, 0, s8')
    a('v_cmp_gt_u32 vcc, 224, v0')
    a('s_and_saveexec_b64 s[10:11], vcc')
    a('s_cbranch_execz L_k0_g_restore')
    a('v_cmp_le_u32 vcc, 112, v0')
    a.nop(2)
    a('v_cndmask_b32 v40, 0, 1, vcc')
    a('v_mul_u32_u24 v41, 112, v40')
    a('v_sub_u32 v41, v0, v41')
    a('v_cvt_f32_u32 v42, v40')
    a('v_mul_f32 v42, 0.25, v42')
    a('v_mov_b32 v47, s2')
    a('s_cmp_lg_u32 s2, 0')
    a('s_cbranch_scc1 L_k0_g_f')
    a('v_mul_u32_u24 v47, 224, v40')
    a('v_mov_b32 v42, 0')
    a.label('L_k0_g_f')
    a('v_lshlrev_b32 v43, 2, v41')
    for e in range(4):
        a('v_add_u32 v44, %d, v43' % e)
        a('v_mul_u32_u24 v44, v47, v44')
        mod448(a, 44, 45, 46)
        a('v_cvt_f32_u32 v46, v46')
        a('v_fma_f32 v46, v46, s7, v42')
        a('v_cos_f32 v%d, v46' % (48 + e))
        a.nop(1)
        a('v_mul_f32 v%d, s8, v%d' % (48 + e, 48 + e))
    a('v_cvt_pk_bf16_f32 v52, v48, v49')
    a('v_cvt_pk_bf16_f32 v53, v50, v51')
    a('s_lshl_b32 s9, s2, 1')
    a('v_add_u32 v44, s9, v40')
    a('v_mul_u32_u24 v44, 896, v44')
    a('v_lshl_add_u32 v44, v41, 3, v44')
    a('buffer_store_dwordx2 v[52:53], v44, s[48:51], 0 offen')
    a.label('L_k0_g_restore')
    a('s_mov_b64 exec, s[10:11]')
    a.label('L_k0_nog')
    stamp(a, 2)
    F0 = 40
    a('s_waitcnt vmcnt(%d)' % (6 if PREFETCH else 0))
    stamp(a, 3)
    a('v_cmp_gt_u32 vcc, 225, v0')
    a('s_and_saveexec_b64 s[10:11], vcc')
    a('s_cbranch_execz L_k0_wt_restore')
    a('v_lshlrev_b32 v36, 13, v0')
    for pl in range(2):
        for q in range(4):
            a('v_lshl_or_b32 v%d, v%d, 16, v%d' % (228 + 4 * pl + q, 212 + 8 * pl + 2 * q + 1, 212 + 8 * pl + 2 * q))
    a('s_lshl_b32 s8, s3, 6')
    a('s_lshl_b32 s9, s4, 4')
    a('s_add_u32 s8, s8, s9')
    a('s_add_u32 s9, s8, 4096')
    a('buffer_store_dwordx4 v[228:231], v36, s[60:63], s8 offen')
    a('buffer_store_dwordx4 v[232:235], v36, s[60:63], s9 offen')
    a.label('L_k0_wt_restore')
    a('s_mov_b64 exec, s[10:11]')
    for i in range(28):
        a('v_lshlrev_b32 v%d, 16, v%d' % (F0 + 2 * i, 8 + i))
        a('v_and_b32 v%d, 0xffff0000, v%d' % (F0 + 2 * i + 1, 8 + i))
    for k in range(4):
        a('v_add_f32 v%d, v%d, v%d' % (96 + k, F0 + k, F0 + 4 + k))
    for i in range(8, 56):
        a('v_add_f32 v%d, v%d, v%d' % (96 + (i & 3), 96 + (i & 3), F0 + i))
    a('v_add_f32 v96, v96, v97')
    a('v_add_f32 v98, v98, v99')
    a('v_add_f32 v96, v96, v98')
    def red8(r):
        a.nop(2)
        a('v_add_f32_dpp v%d, v%d, v%d quad_perm:[1,0,3,2] row_mask:0xf bank_mask:0xf' % (r, r, r))
        a.nop(2)
        a('v_add_f32_dpp v%d, v%d, v%d quad_perm:[2,3,0,1] row_mask:0xf bank_mask:0xf' % (r, r, r))
        a.nop(2)
        a('v_add_f32_dpp v%d, v%d, v%d row_half_mirror row_mask:0xf bank_mask:0xf' % (r, r, r))
    red8(96)
    a('v_mul_f32 v97, s7, v96')
    a('v_mov_b32 v96, 0')
    a('v_mov_b32 v98, 0')
    for i in range(56):
        acc = 96 if (i & 1) == 0 else 98
        a('v_sub_f32 v99, v%d, v97' % (F0 + i))
        a('v_fmac_f32 v%d, v99, v99' % acc)
    a('v_add_f32 v96, v96, v98')
    red8(96)
    a('v_mul_f32 v96, s7, v96')
    a('v_cvt_pk_bf16_f32 v98, v97, v96')
    a('v_lshlrev_b32 v97, 16, v98')
    a('v_and_b32 v96, 0xffff0000, v98')
    a('v_add_f32 v96, 0x%x, v96' % f32bits(1e-5))
    a('v_cvt_pk_bf16_f32 v96, v96, v96')
    a('v_lshlrev_b32 v96, 16, v96')
    a('v_sqrt_f32 v96, v96')
    a.nop(1)
    a('v_cvt_pk_bf16_f32 v96, v96, v96')
    a('v_lshlrev_b32 v96, 16, v96')
    a('v_rcp_f32 v96, v96')
    a.nop(1)
    for i in range(28):
        x0, x1 = F0 + 2 * i, F0 + 2 * i + 1
        a('v_sub_f32 v%d, v%d, v97' % (x0, x0))
        a('v_sub_f32 v%d, v%d, v97' % (x1, x1))
        a('v_cvt_pk_bf16_f32 v99, v%d, v%d' % (x0, x1))
        a('v_lshlrev_b32 v%d, 16, v99' % x0)
        a('v_and_b32 v%d, 0xffff0000, v99' % x1)
        a('v_mul_f32 v%d, v%d, v96' % (x0, x0))
        a('v_mul_f32 v%d, v%d, v96' % (x1, x1))
        a('v_cvt_pk_bf16_f32 v%d, v%d, v%d' % (8 + i, x0, x1))
    a('v_mul_u32_u24 v98, %d, v1' % PITCH)
    a('v_lshl_add_u32 v98, v2, 4, v98')
    for i in range(7):
        a('ds_write_b128 v98, %s offset:%d' % (vr(8 + 4 * i, 4), 128 * i))
    a('s_cmp_lg_u32 s4, 0')
    a('s_cbranch_scc1 L_k0_noxn')
    for i in range(7):
        a('buffer_store_dwordx4 %s, v3, s[40:43], s5 offen offset:%d' % (vr(8 + 4 * i, 4), 128 * i))
    a.label('L_k0_noxn')
    stamp(a, 4)
    ACC = 60
    for i in range(16):
        a('v_mov_b32 v%d, 0' % (ACC + i))
    a('v_and_b32 v84, 15, v0')
    a('v_lshrrev_b32 v85, 2, v84')
    a('v_and_b32 v84, 3, v84')
    a('v_lshl_add_u32 v84, v85, 3, v84')
    a('v_mul_u32_u24 v84, %d, v84' % PITCH)
    a('v_lshl_add_u32 v84, v5, 1, v84')
    a('s_waitcnt lgkmcnt(0)')
    a('s_barrier')
    stamp(a, 5)
    AF = [76, 88]
    AF = [76, 40]
    def rd(t, buf):
        a('ds_read_b128 %s, v84 offset:%d' % (vr(buf, 4), 64 * t))
        a('ds_read_b128 %s, v84 offset:%d' % (vr(buf + 4, 4), 64 * t + 4 * PITCH))
    rd(0, AF[0])
    for t in range(14):
        cur = AF[t & 1]
        if t + 1 < 14:
            rd(t + 1, AF[(t + 1) & 1])
            a('s_waitcnt lgkmcnt(2)')
        else:
            a('s_waitcnt lgkmcnt(0)')
        for mt in range(2):
            for c in range(2):
                d = ACC + 8 * mt + 4 * c
                a('v_mfma_f32_16x16x32_bf16 %s, %s, %s, %s' % (vr(d, 4), vr(cur + 4 * mt, 4), vr(BF + 8 * t + 4 * c, 4), vr(d, 4)))
    a.nop(10)
    stamp(a, 6)
    a('v_lshlrev_b32 v85, 13, v4')
    a('v_lshl_add_u32 v85, v5, 1, v85')
    a('v_add_u32 v86, 4096, v85')
    a('s_lshl_b32 s6, s3, 6')
    for c in range(2):
        o = 88 + 4 * c
        for mt in range(2):
            d = ACC + 8 * mt + 4 * c
            a('v_cvt_pk_bf16_f32 v%d, v%d, v%d' % (o + 2 * mt, d, d + 1))
            a('v_cvt_pk_bf16_f32 v%d, v%d, v%d' % (o + 2 * mt + 1, d + 2, d + 3))
        a('buffer_store_dwordx4 %s, v%d, s[44:47], s6 offen' % (vr(o, 4), 85 + c))
    a('s_waitcnt vmcnt(0)') if STAMPS else None
    stamp(a, 7)
    dump_stamps(a, 8, 100, 'k0')
    a.label('L_k0_end')
    a('s_endpgm')
    return a.text(), 256, 32 * PITCH
```

```python
from asmlib import *
from k0 import *
import fft

def gelu_epilogue(a, ACC, T, OUT, store):
    for v in range(2):
        for p in range(8):
            g0, g1 = ACC + 16 * v + 2 * p, ACC + 16 * v + 2 * p + 1
            u0, u1 = g0 + 32, g1 + 32
            a('v_cvt_pk_bf16_f32 v%d, v%d, v%d' % (T, g0, g1))
            a('v_cvt_pk_bf16_f32 v%d, v%d, v%d' % (T + 1, u0, u1))
            a('v_lshlrev_b32 v%d, 16, v%d' % (g0, T))
            a('v_and_b32 v%d, 0xffff0000, v%d' % (g1, T))
            a('v_lshlrev_b32 v%d, 16, v%d' % (u0, T + 1))
            a('v_and_b32 v%d, 0xffff0000, v%d' % (u1, T + 1))
            for k, g in enumerate((g0, g1)):
                a('v_mul_f32 v%d, v%d, v%d' % (T + 2 + k, g, g))
            for k, g in enumerate((g0, g1)):
                a('v_fma_f32 v%d, v%d, s12, 1.0' % (T + 2 + k, T + 2 + k))
            for k, g in enumerate((g0, g1)):
                a('v_mul_f32 v%d, v%d, v%d' % (T + 2 + k, T + 2 + k, g))
            for k, g in enumerate((g0, g1)):
                a('v_mul_f32 v%d, s13, v%d' % (T + 2 + k, T + 2 + k))
            for k, g in enumerate((g0, g1)):
                a('v_exp_f32 v%d, v%d' % (T + 2 + k, T + 2 + k))
            a.nop(1)
            for k, g in enumerate((g0, g1)):
                a('v_add_f32 v%d, 1.0, v%d' % (T + 2 + k, T + 2 + k))
            for k, g in enumerate((g0, g1)):
                a('v_rcp_f32 v%d, v%d' % (T + 2 + k, T + 2 + k))
            a.nop(1)
            for k, g in enumerate((g0, g1)):
                a('v_mul_f32 v%d, v%d, v%d' % (T + 2 + k, T + 2 + k, g))
            a('v_cvt_pk_bf16_f32 v%d, v%d, v%d' % (T, T + 2, T + 3))
            a('v_lshlrev_b32 v%d, 16, v%d' % (T + 2, T))
            a('v_and_b32 v%d, 0xffff0000, v%d' % (T + 3, T))
            a('v_mul_f32 v%d, v%d, v%d' % (T + 2, T + 2, u0))
            a('v_mul_f32 v%d, v%d, v%d' % (T + 3, T + 3, u1))
            a('v_cvt_pk_bf16_f32 v%d, v%d, v%d' % (OUT + 8 * v + p, T + 2, T + 3))
        for hh in range(2):
            store(v, hh, OUT + 8 * v + 4 * hh)

def gen_k1():
    a = Asm()
    NS = 3
    STG = 49152
    BOFF = 32768
    UPO = 8192
    LBF = NS * STG
    VD, VA0, VA1 = 190, 191, 192
    a('s_cmp_ge_u32 s2, 225')
    a('s_cbranch_scc1 L_k1_end')
    stamp(a, 0)
    load_ptrs(a)
    a('v_lshrrev_b32 v1, 6, v0')
    a('v_and_b32 v2, 63, v0')
    a('v_readfirstlane_b32 s3, v1')
    a('s_and_b32 s4, s2, 7')
    a('s_lshr_b32 s5, s2, 3')
    a('s_lshr_b32 s6, s4, 2')
    a('s_and_b32 s7, s4, 3')
    a('s_lshl_b32 s6, s6, 2')
    a('s_and_b32 s8, s5, 3')
    a('s_add_u32 s4, s6, s8')
    a('s_mul_i32 s7, s7, 7')
    a('s_lshr_b32 s5, s5, 2')
    a('s_add_u32 s5, s7, s5')
    a('s_mul_i32 s6, s4, 229376')
    a('v_lshrrev_b32 v5, 3, v2')
    a('v_lshl_add_u32 v5, v1, 5, v5')
    a('v_mul_u32_u24 v5, 896, v5')
    a('v_and_b32 v7, 7, v2')
    a('v_lshrrev_b32 v8, 4, v2')
    a('v_xor_b32 v8, v7, v8')
    a('v_lshl_add_u32 v%d, v8, 4, v5' % VA0)
    a('v_xor_b32 v8, 4, v8')
    a('v_lshl_add_u32 v%d, v8, 4, v5' % VA1)
    a('v_add_u32 v%d, 7168, v%d' % (VA1, VA1))
    a('v_lshrrev_b32 v6, 3, v2')
    a('v_lshl_add_u32 v6, v1, 3, v6')
    a('v_mul_u32_u24 v6, 3584, v6')
    a('v_bfe_u32 v8, v2, 4, 1')
    a('v_lshlrev_b32 v8, 2, v8')
    a('v_xor_b32 v7, v7, v8')
    a('v_lshl_add_u32 v%d, v7, 4, v6' % VD)
    a('s_lshl_b32 s7, s5, 7')
    a('s_lshl_b32 s8, s3, 10')
    a('s_lshl_b32 s11, s3, 12')
    a('s_waitcnt lgkmcnt(0)')
    a.srd(36, 34, 35, XN_BYTES, XN_OFF)
    a.srd(40, 24, 25, 448 * 3584)
    a.srd(44, 26, 27, 448 * 3584)
    a.srd(48, 34, 35, H_BYTES, H_OFF)
    def issue(c):
        sb = (c % NS) * STG
        a('s_add_u32 s9, s7, %d' % (c * 229376))
        a('s_add_u32 s10, s8, %d' % (sb + BOFF))
        a('s_mov_b32 m0, s10')
        a('s_add_u32 s10, s10, %d' % UPO)
        a('buffer_load_dwordx4 v%d, s[40:43], s9 offen lds' % VD)
        a('s_mov_b32 m0, s10')
        a('s_add_u32 s14, s6, %d' % (c * 128))
        a('buffer_load_dwordx4 v%d, s[44:47], s9 offen lds' % VD)
        for q in range(4):
            a('s_add_u32 s10, s11, %d' % (sb + q * 1024))
            a('s_mov_b32 m0, s10')
            if q == 2:
                a('s_add_u32 s14, s14, 14336')
            else:
                a.nop(1)
            a('buffer_load_dwordx4 v%d, s[36:39], s14 offen lds' % (VA0 + (q & 1)))
    a('s_cmp_ge_u32 s3, 4')
    a('s_cbranch_scc1 L_k1_nofft')
    fft.fft_issue(a, LBF, 3, 2)
    for c in range(NS - 1):
        issue(c)
    stamp(a, 1)
    fft.fft_compute(a, LBF, 2, 4 + 12, 12, 'k1')
    a('s_branch L_k1_gemm')
    a.label('L_k1_nofft')
    for c in range(NS - 1):
        issue(c)
    a('s_barrier')
    a('s_barrier')
    a.label('L_k1_gemm')
    a('s_cmp_lt_u32 s2, 224')
    a('s_cbranch_scc1 L_k1_gemm2')
    a('s_waitcnt vmcnt(0)')
    a('s_endpgm')
    a.label('L_k1_gemm2')
    a('v_lshrrev_b32 v1, 6, v0')
    a('v_and_b32 v2, 63, v0')
    a('v_and_b32 v3, 31, v2')
    a('v_lshl_add_u32 v3, v1, 5, v3')
    a('v_lshrrev_b32 v4, 5, v2')
    a('v_lshrrev_b32 v8, 4, v2')
    a('v_and_b32 v9, 15, v2')
    a('v_lshrrev_b32 v10, 2, v9')
    a('v_and_b32 v11, 3, v9')
    a('v_lshrrev_b32 v12, 1, v8')
    a('v_lshl_add_u32 v12, v12, 3, v10')
    a('v_lshlrev_b32 v12, 7, v12')
    a('v_and_b32 v13, 1, v11')
    a('v_lshlrev_b32 v13, 1, v13')
    a('v_and_b32 v14, 1, v8')
    a('v_add_u32 v13, v13, v14')
    a('v_lshrrev_b32 v14, 1, v10')
    a('v_lshl_add_u32 v13, v14, 2, v13')
    a('v_lshl_add_u32 v12, v13, 4, v12')
    a('v_lshrrev_b32 v14, 1, v11')
    a('v_lshl_add_u32 v16, v14, 3, v12')
    a('v_xor_b32 v17, 64, v16')
    VB = 24
    for s in range(NS):
        a('v_add_u32 v%d, %d, v16' % (VB + 2 * s, s * STG + BOFF))
        a('v_add_u32 v%d, %d, v17' % (VB + 2 * s + 1, s * STG + BOFF))
    VX = 96
    a('v_bfe_u32 v9, v3, 1, 3')
    for kk in range(4):
        a('v_add_u32 v10, %d, v4' % (2 * kk))
        a('v_xor_b32 v10, v10, v9')
        a('v_lshlrev_b32 v10, 4, v10')
        a('v_lshl_add_u32 v10, v3, 7, v10')
        for s in range(NS):
            a('v_add_u32 v%d, %d, v10' % (VX + 4 * s + kk, s * STG))
    WF = [32, 52]
    ACC = 112
    for i in range(64):
        a('v_mov_b32 v%d, 0' % (ACC + i))
    def rd(s, kk, buf):
        a('ds_read_b128 %s, v%d' % (vr(buf + 16, 4), VX + 4 * s + kk))
        for u in range(4):
            for h in range(2):
                a('ds_read_b64_tr_b16 %s, v%d offset:%d' % (vr(buf + 4 * u + 2 * h, 2), VB + 2 * s + (u & 1), (u >> 1) * UPO + kk * 2048 + h * 512))
    for c in range(7):
        s = c % NS
        later = min(NS - 2, 6 - c)
        a('s_waitcnt vmcnt(%d)' % (6 * later))
        a('s_barrier')
        stamp(a, 2 + c)
        if c + NS - 1 < 7:
            issue(c + NS - 1)
        rd(s, 0, WF[0])
        for kk in range(4):
            cur = WF[kk & 1]
            if kk < 3:
                rd(s, kk + 1, WF[(kk + 1) & 1])
                a('s_waitcnt lgkmcnt(9)')
            else:
                a('s_waitcnt lgkmcnt(0)')
            for u in range(4):
                d = ACC + 16 * u
                a('v_mfma_f32_32x32x16_bf16 %s, %s, %s, %s' % (vr(d, 16), vr(cur + 4 * u, 4), vr(cur + 16, 4), vr(d, 16)))
    a.nop(14)
    stamp(a, 9)
    a('s_mov_b32 s12, 0x%x' % f32bits(0.044715))
    a('s_mov_b32 s13, 0x%x' % f32bits(-2.0 * 0.7978845608028654 * 1.4426950408889634))
    a('v_mul_u32_u24 v5, 3584, v3')
    a('v_lshl_add_u32 v5, v4, 5, v5')
    a('s_mul_i32 s14, s4, %d' % (256 * 3584))
    a('s_add_u32 s14, s14, s7')
    def store(v, hh, reg):
        a('buffer_store_dwordx4 %s, v5, s[48:51], s14 offen offset:%d' % (vr(reg, 4), 64 * v + 16 * hh))
    gelu_epilogue(a, ACC, 32, 64, store)
    stamp(a, 10)
    a('s_waitcnt vmcnt(0)') if STAMPS else None
    stamp(a, 11)
    dump_stamps(a, 12, 100, 'k1')
    a.label('L_k1_end')
    a('s_endpgm')
    return a.text(), 196, NS * STG + 16384
```

```python
import sys, os
import asmlib
asmlib.STAMPS = bool(os.environ.get('STAMPS'))
from asmlib import *
import k0, k1, k2, k3, k1f

HEADER = open('parallel_sum__spectral_gfnet__glu_gated_geglu__prompt.s.ref').read().split('; Override launch')[0]

def build(kernels, path):
    s = HEADER
    for name, body, vg, grid, block, lds in kernels:
        s += '; @launch kernel=%s grid=(%d,1,1) block=(%d,1,1) lds=%d\n' % (name, grid, block, lds)
    s += '.amdgcn_target "amdgcn-amd-amdhsa--gfx950"\n.text\n'
    seen = set()
    for name, body, vg, grid, block, lds in kernels:
        if name in seen: continue
        seen.add(name)
        s += kernel_header(name) + body
    s += '.section .rodata,"a"\n'
    seen = set()
    for name, body, vg, grid, block, lds in kernels:
        if name in seen: continue
        seen.add(name)
        s += '.p2align 6\n' + kernel_desc(name, vg)
    open(path, 'w').write(s)

if __name__ == '__main__':
    ks = []
    b, vg, lds = k0.gen_k0()
    ks.append(('k0_kernel', b, vg, 256, 256, lds))
    if os.environ.get('NOFUSE'):
        b, vg, lds = k2.gen_k2()
        ks.append(('k2_kernel', b, vg, 225, 256, lds))
        b, vg, lds = k1.gen_k1()
        ks.append(('k1_kernel', b, vg, 224, 512, lds))
    else:
        b, vg, lds = k1f.gen_k1()
        ks.append(('k1_kernel', b, vg, 225, 512, lds))
    b, vg, lds = k3.gen_k3()
    ks.append(('k3_kernel', b, vg, 224, 512, lds))
    build(ks, sys.argv[1] if len(sys.argv) > 1 else 'cur.s')
```

```python
import struct, math

def f32bits(x):
    return struct.unpack('<I', struct.pack('<f', x))[0]

class Asm:
    def __init__(self):
        self.lines = []
    def __call__(self, s):
        for ln in s.strip('\n').split('\n'):
            ln = ln.strip()
            if ln:
                self.lines.append('    ' + ln)
    def label(self, l):
        self.lines.append(l + ':')
    def c(self, s):
        self.lines.append('    ; ' + s)
    def nop(self, n):
        while n > 0:
            k = min(n, 16)
            self.lines.append('    s_nop %d' % (k - 1))
            n -= k
    def text(self):
        return '\n'.join(self.lines) + '\n'

    def srd(self, d, base_lo, base_hi, nbytes, off=0):
        if off:
            self('s_add_u32 s%d, s%d, 0x%x' % (d, base_lo, off))
            self('s_addc_u32 s%d, s%d, 0' % (d + 1, base_hi))
        else:
            self('s_mov_b32 s%d, s%d' % (d, base_lo))
            self('s_mov_b32 s%d, s%d' % (d + 1, base_hi))
        self('s_mov_b32 s%d, 0x%x' % (d + 2, nbytes))
        self('s_mov_b32 s%d, 0x00020000' % (d + 3))

def vr(a, n):
    return 'v[%d:%d]' % (a, a + n - 1)

def kernel_header(name):
    return '.globl %s\n.p2align 8\n.type %s,@function\n%s:\n' % (name, name, name)

def kernel_desc(name, vgpr, sgpr=102):
    acc = (vgpr + 3) // 4 * 4
    return ('.amdhsa_kernel %s\n'
            '  .amdhsa_next_free_vgpr %d\n'
            '  .amdhsa_next_free_sgpr %d\n'
            '  .amdhsa_accum_offset %d\n'
            '  .amdhsa_group_segment_fixed_size 0\n'
            '  .amdhsa_kernarg_size 80\n'
            '  .amdhsa_user_sgpr_count 2\n'
            '  .amdhsa_user_sgpr_kernarg_segment_ptr 1\n'
            '  .amdhsa_system_sgpr_workgroup_id_x 1\n'
            '.end_amdhsa_kernel\n') % (name, vgpr, sgpr, acc)

STAMPS = False
import os
def stamp(a, idx):
    if not STAMPS: return
    a('%s s[%d:%d]' % ('s_memrealtime' if os.environ.get('REALT') else 's_memtime', 74 + 2 * idx, 75 + 2 * idx))
    a('s_waitcnt lgkmcnt(0)')

def dump_stamps(a, n, wg=0, lbl='x'):
    if not STAMPS: return
    a('s_cmp_lg_u32 s2, %d' % wg)
    a('s_cbranch_scc1 L_nostamp_%s' % lbl)
    a('v_cmp_gt_u32 vcc, 1, v0')
    a('s_and_saveexec_b64 s[62:63], vcc')
    a('s_cbranch_execz L_nostamp2_%s' % lbl)
    a('s_mov_b32 s40, s32')
    a('s_mov_b32 s41, s33')
    a('s_mov_b32 s42, 256')
    a('s_mov_b32 s43, 0x00020000')
    a('v_mov_b32 v1, 0')
    for i in range(n):
        a('v_mov_b32 v2, s%d' % (74 + 2 * i))
        a('v_mov_b32 v3, s%d' % (75 + 2 * i))
        a('buffer_store_dwordx2 v[2:3], v1, s[40:43], 0 offen offset:%d' % (8 * i))
        a.nop(2)
    a.label('L_nostamp2_%s' % lbl)
    a('s_mov_b64 exec, s[62:63]')
    a.label('L_nostamp_%s' % lbl)

def dump_wave_stamps(a, idxs, wg, lbl):
    if not STAMPS: return
    a('s_cmp_lg_u32 s2, %d' % wg)
    a('s_cbranch_scc1 L_nostamp_%s' % lbl)
    a('v_and_b32 v1, 63, v0')
    a('v_cmp_gt_u32 vcc, 1, v1')
    a('s_and_saveexec_b64 s[62:63], vcc')
    a('s_mov_b32 s40, s32')
    a('s_mov_b32 s41, s33')
    a('s_mov_b32 s42, 256')
    a('s_mov_b32 s43, 0x00020000')
    a('v_lshrrev_b32 v1, 6, v0')
    a('v_lshlrev_b32 v1, 5, v1')
    for k, i in enumerate(idxs):
        a('v_mov_b32 v2, s%d' % (74 + 2 * i))
        a('v_mov_b32 v3, s%d' % (75 + 2 * i))
        a('buffer_store_dwordx2 v[2:3], v1, s[40:43], 0 offen offset:%d' % (8 * k))
        a.nop(2)
    a('s_mov_b64 exec, s[62:63]')
    a.label('L_nostamp_%s' % lbl)
```

```python
from asmlib import *
from k0 import *

def cs(a, dc, ds, idx, sc, tmp):
    a('v_cvt_f32_u32 v%d, v%d' % (tmp, idx))
    a('v_mul_f32 v%d, s%d, v%d' % (tmp, sc, tmp))
    a('v_cos_f32 v%d, v%d' % (dc, tmp))
    a('v_sin_f32 v%d, v%d' % (ds, tmp))

SF_ZT, SF_YT, SF_WT = 52, 56, 60
S_F0, S_LB, S_T, S_T2, S_I64, S_I32, S_I2K = 64, 65, 66, 67, 68, 69, 70
S_SA, S_SB = 71, 72
WPB = [224, 240]
NR = 4

def fft_wg(a, sw, sq):
    a('v_and_b32 v6, 15, v0')
    a('v_bfe_u32 v1, v0, 6, 2')
    a('v_lshl_add_u32 v4, v1, 4, v6')
    a('v_bfe_u32 v5, v0, 4, 2')
    a('v_and_b32 v2, 255, v0')
    a('v_bfe_u32 v3, v0, 5, 1')
    a('v_lshlrev_b32 v3, 1, v3')
    a('v_xor_b32 v2, v2, v3')
    a('v_lshlrev_b32 v2, 4, v2')
    a('s_lshr_b32 s%d, s%d, 2' % (S_T, sw))
    a('s_lshl_b32 s%d, s%d, 1' % (S_F0, sq))
    a('s_add_u32 s%d, s%d, s%d' % (S_F0, S_F0, S_T))
    a('s_mul_i32 s%d, s%d, 69632' % (S_LB, S_T))
    a('s_and_b32 s%d, s%d, 3' % (S_T2, sw))
    a('s_lshl_b32 s%d, s%d, 10' % (S_T2, S_T2))
    a('s_add_u32 s%d, s%d, s%d' % (S_T2, S_T2, S_LB))
    a.srd(SF_ZT, 34, 35, ZT_BYTES, ZT_OFF)
    a.srd(SF_YT, 34, 35, YT_BYTES, YT_OFF)
    a.srd(SF_WT, 34, 35, WT_BYTES, WT_OFF)
    a('v_lshlrev_b32 v3, 6, v4')
    a('v_lshl_add_u32 v3, v5, 3, v3')
    def issue_z(c):
        a('s_add_u32 s%d, s%d, %d' % (S_SA, S_F0, 64 * c))
        a('s_lshl_b32 s%d, s%d, 13' % (S_SA, S_SA))
        a('s_add_u32 s%d, s%d, %d' % (S_T, S_T2, 8192 * c))
        a('s_mov_b32 m0, s%d' % S_T)
        a('s_add_u32 s%d, s%d, 4096' % (S_SB, S_SA))
        a('buffer_load_dwordx4 v2, s[%d:%d], s%d offen lds' % (SF_ZT, SF_ZT + 3, S_SA))
        a('s_add_u32 s%d, s%d, 4096' % (S_T, S_T))
        a('s_mov_b32 m0, s%d' % S_T)
        a.nop(1)
        a('buffer_load_dwordx4 v2, s[%d:%d], s%d offen lds' % (SF_ZT, SF_ZT + 3, S_SB))
    def issue_w(c):
        WP = WPB[c & 1]
        a('s_add_u32 s%d, s%d, %d' % (S_SA, S_F0, 64 * c))
        a('s_lshl_b32 s%d, s%d, 13' % (S_SA, S_SA))
        a('s_add_u32 s%d, s%d, 4096' % (S_SB, S_SA))
        for pl in range(2):
            for mt in range(2):
                a('buffer_load_dwordx2 %s, v3, s[%d:%d], s%d offen offset:%d' % (vr(WP + 4 * pl + 2 * mt, 2), SF_WT, SF_WT + 3, S_SA + pl, 32 * mt))
    issue_z(0)
    issue_z(1)
    issue_w(0)
    issue_w(1)
    stamp(a, 1)
    WR, WI = 80, 88
    a('s_mov_b32 s%d, 0x%x' % (S_I64, f32bits(1.0 / 64)))
    a('s_mov_b32 s%d, 0x%x' % (S_I32, f32bits(1.0 / 32)))
    a('s_mov_b32 s%d, 0x%x' % (S_I2K, f32bits(1.0 / 2048)))
    C1, S1, NS1 = 16, 24, 32
    C2, S2, NS2 = 40, 48, 56
    TWC, TWS = 64, 72
    T0 = 152
    def rotblk(Cd, Sd, Cs, Ss, P):
        a('v_pk_mul_f32 %s, %s, %s op_sel:[0,0] op_sel_hi:[1,0]' % (vr(Cd, 2), vr(Cs, 2), vr(P, 2)))
        a('v_pk_mul_f32 %s, %s, %s op_sel:[0,0] op_sel_hi:[1,0]' % (vr(Sd, 2), vr(Ss, 2), vr(P, 2)))
        a('v_pk_fma_f32 %s, %s, %s, %s op_sel:[0,1,0] op_sel_hi:[1,1,1] neg_lo:[1,0,0] neg_hi:[1,0,0]' % (vr(Cd, 2), vr(Ss, 2), vr(P, 2), vr(Cd, 2)))
        a('v_pk_fma_f32 %s, %s, %s, %s op_sel:[0,1,0] op_sel_hi:[1,1,1]' % (vr(Sd, 2), vr(Cs, 2), vr(P, 2), vr(Sd, 2)))
    X1C, X1S = 96, 104
    X2C, X2S = 112, 116
    P12, P14, P22, PT2, PT16 = 120, 122, 124, 126, 128
    t = T0
    a('v_lshlrev_b32 v7, 3, v5')
    a('v_mul_u32_u24 v%d, v7, v4' % t)
    a('v_add_u32 v%d, v%d, v4' % (t + 1, t))
    a('v_lshlrev_b32 v%d, 1, v4' % (t + 2))
    a('v_lshlrev_b32 v%d, 2, v4' % (t + 3))
    for e in range(4):
        a('v_and_b32 v%d, 63, v%d' % (t + e, t + e))
    cs(a, X1C, X1S, t, S_I64, t + 4)
    cs(a, X1C + 1, X1S + 1, t + 1, S_I64, t + 5)
    cs(a, P12, P12 + 1, t + 2, S_I64, t + 6)
    cs(a, P14, P14 + 1, t + 3, S_I64, t + 7)
    a('v_lshlrev_b32 v7, 2, v5')
    a('v_mul_u32_u24 v%d, v7, v6' % t)
    a('v_add_u32 v%d, v%d, v6' % (t + 1, t))
    a('v_lshlrev_b32 v%d, 1, v6' % (t + 2))
    for e in range(3):
        a('v_and_b32 v%d, 31, v%d' % (t + e, t + e))
    cs(a, X2C, X2S, t, S_I32, t + 4)
    cs(a, X2C + 1, X2S + 1, t + 1, S_I32, t + 5)
    cs(a, P22, P22 + 1, t + 2, S_I32, t + 6)
    a('v_mul_u32_u24 v%d, v7, v4' % t)
    a('v_add_u32 v%d, v%d, v4' % (t + 1, t))
    a('v_lshlrev_b32 v%d, 1, v4' % (t + 2))
    a('v_lshlrev_b32 v%d, 4, v4' % (t + 3))
    cs(a, TWC, TWS, t, S_I2K, t + 4)
    cs(a, TWC + 1, TWS + 1, t + 1, S_I2K, t + 5)
    cs(a, PT2, PT2 + 1, t + 2, S_I2K, t + 6)
    cs(a, PT16, PT16 + 1, t + 3, S_I2K, t + 7)
    a('v_and_b32 v8, 1, v0')
    a('v_mul_u32_u24 v8, 0x8000, v8')
    a('v_lshl_or_b32 v8, v8, 16, v8')
    rotblk(X1C + 2, X1S + 2, X1C, X1S, P12)
    rotblk(X2C + 2, X2S + 2, X2C, X2S, P22)
    rotblk(TWC + 2, TWS + 2, TWC, TWS, PT2)
    rotblk(X1C + 4, X1S + 4, X1C, X1S, P14)
    rotblk(X1C + 6, X1S + 6, X1C + 2, X1S + 2, P14)
    rotblk(TWC + 4, TWS + 4, TWC, TWS, PT16)
    rotblk(TWC + 6, TWS + 6, TWC + 2, TWS + 2, PT16)
    for q in range(4):
        a('v_cvt_pk_bf16_f32 v%d, v%d, v%d' % (C1 + q, X1C + 2 * q, X1C + 2 * q + 1))
        a('v_cvt_pk_bf16_f32 v%d, v%d, v%d' % (S1 + q, X1S + 2 * q, X1S + 2 * q + 1))
        a('v_cvt_pk_bf16_f32 v%d, -v%d, -v%d' % (NS1 + q, X1S + 2 * q, X1S + 2 * q + 1))
    for T in (C1, S1, NS1):
        for q in range(4):
            a('v_xor_b32 v%d, v8, v%d' % (T + 4 + q, T + q))
    for q in range(2):
        a('v_cvt_pk_bf16_f32 v%d, v%d, v%d' % (C2 + q, X2C + 2 * q, X2C + 2 * q + 1))
        a('v_cvt_pk_bf16_f32 v%d, v%d, v%d' % (S2 + q, X2S + 2 * q, X2S + 2 * q + 1))
        a('v_cvt_pk_bf16_f32 v%d, -v%d, -v%d' % (NS2 + q, X2S + 2 * q, X2S + 2 * q + 1))
    for T in (C2, S2, NS2):
        for q in range(2):
            a('v_xor_b32 v%d, v8, v%d' % (T + 2 + q, T + q))
        for q in range(4):
            a('v_xor_b32 v%d, 0x80000000, v%d' % (T + 4 + q, T + q))
    a('v_lshrrev_b32 v8, 2, v6')
    a('v_and_b32 v9, 3, v6')
    a('v_lshl_add_u32 v8, v5, 3, v8')
    a('v_mul_u32_u24 v11, 72, v8')
    a('v_lshl_add_u32 v11, v9, 4, v11')
    a('v_add_u32 v11, s%d, v11' % S_LB)
    a('v_add_u32 v11, 32768, v11')
    a('v_lshlrev_b32 v8, 6, v8')
    a('v_add_u32 v8, s%d, v8' % S_LB)
    a('v_lshl_add_u32 v10, v9, 3, v8')
    a('v_and_b32 v9, 1, v5')
    a('v_lshl_add_u32 v10, v9, 5, v10')
    a('v_xor_b32 v14, 32, v10')
    a('v_lshlrev_b32 v12, 6, v4')
    a('v_lshl_add_u32 v13, v5, 4, v12')
    a('v_mul_u32_u24 v12, 72, v4')
    a('v_lshl_add_u32 v12, v5, 3, v12')
    a('v_add_u32 v12, s%d, v12' % S_LB)
    a('v_add_u32 v12, 32768, v12')
    def mf(d, x, y, z=False):
        a('v_mfma_f32_16x16x32_bf16 %s, %s, %s, %s' % (vr(d, 4), vr(x, 4), vr(y, 4), '0' if z else vr(d, 4)))
    NEG = ' neg_lo:[1,0,0] neg_hi:[1,0,0]'
    class Col:
        def __init__(self, c):
            self.c = c
            b = 80 + 72 * (c & 1)
            self.ZR, self.ZI, self.ACC, self.T0, self.BR, self.BI = b, b + 16, b + 32, b + 48, b + 64, b + 68
            self.WP = WPB[c & 1]
        def TR(self, mt): return self.ACC + 4 * mt
        def TI(self, mt): return self.ACC + 8 + 4 * mt
        def reads(self, base, mtstep):
            for pl, Z in ((0, self.ZR), (1, self.ZI)):
                for mt in range(2):
                    for ks in range(2):
                        for h in range(2):
                            d = Z + 8 * mt + 4 * ks + 2 * h
                            if base == 10:
                                a('ds_read_b64_tr_b16 %s, v%d offset:%d' % (vr(d, 2), 14 if mt else 10, 8192 * self.c + pl * 4096 + ks * 2048 + h * 256))
                            else:
                                a('ds_read_b64_tr_b16 %s, v%d offset:%d' % (vr(d, 2), base, 9216 * self.c + pl * 4608 + ks * 2304 + h * 288 + mt * 8))
        def big(self, inv):
            Sa, Sb = (NS1, S1) if inv else (S1, NS1)
            for mt in range(2):
                for ks in range(2):
                    zr, zi = self.ZR + 8 * mt + 4 * ks, self.ZI + 8 * mt + 4 * ks
                    mf(self.TR(mt), zr, C1 + 4 * ks, ks == 0)
                    mf(self.TI(mt), zi, C1 + 4 * ks, ks == 0)
                    mf(self.TR(mt), zi, Sa + 4 * ks)
                    mf(self.TI(mt), zr, Sb + 4 * ks)
        def small(self, inv):
            Sa, Sb = (NS2, S2) if inv else (S2, NS2)
            a.nop(2)
            for mt in range(2):
                mf(self.TR(mt), C2 + 4 * mt, self.BR, True)
                mf(self.TI(mt), C2 + 4 * mt, self.BI, True)
                mf(self.TR(mt), Sa + 4 * mt, self.BI)
                mf(self.TI(mt), Sb + 4 * mt, self.BR)
        def pack(self):
            T = self.T0
            for q in range(4):
                a('v_cvt_pk_bf16_f32 v%d, v%d, v%d' % (self.BR + q, T + 2 * q, T + 2 * q + 1))
                a('v_cvt_pk_bf16_f32 v%d, v%d, v%d' % (self.BI + q, T + 8 + 2 * q, T + 8 + 2 * q + 1))
        def twiddle(self, conj):
            T = self.T0
            for i in range(8):
                tr_, ti_ = self.ACC + i, self.ACC + 8 + i
                a('v_mul_f32 v%d, v%d, v%d' % (T + i, tr_, TWC + i))
                a('v_mul_f32 v%d, v%d, v%d' % (T + 8 + i, ti_, TWC + i))
                if not conj:
                    a('v_fmac_f32 v%d, v%d, v%d' % (T + i, ti_, TWS + i))
                    a('v_fma_f32 v%d, -v%d, v%d, v%d' % (T + 8 + i, tr_, TWS + i, T + 8 + i))
                else:
                    a('v_fma_f32 v%d, -v%d, v%d, v%d' % (T + i, ti_, TWS + i, T + i))
                    a('v_fmac_f32 v%d, v%d, v%d' % (T + 8 + i, tr_, TWS + i))
            self.pack()
        def wmul(self):
            T = self.T0
            WR, WI = self.ZR, self.ZR + 8
            for i in range(16):
                src = self.WP + (i >> 1)
                if i & 1:
                    a('v_and_b32 v%d, 0xffff0000, v%d' % (WR + i, src))
                else:
                    a('v_lshlrev_b32 v%d, 16, v%d' % (WR + i, src))
            for i in range(8):
                xr, xi = self.ACC + i, self.ACC + 8 + i
                a('v_mul_f32 v%d, v%d, v%d' % (T + i, xr, WR + i))
                a('v_mul_f32 v%d, v%d, v%d' % (T + 8 + i, xr, WI + i))
                a('v_fma_f32 v%d, -v%d, v%d, v%d' % (T + i, xi, WI + i, T + i))
                a('v_fmac_f32 v%d, v%d, v%d' % (T + 8 + i, xi, WR + i))
            self.pack()
        def t2write(self):
            for mt in range(2):
                a('ds_write_b64 v12, %s offset:%d' % (vr(self.BR + 2 * mt, 2), 9216 * self.c + 32 * mt))
                a('ds_write_b64 v12, %s offset:%d' % (vr(self.BI + 2 * mt, 2), 9216 * self.c + 4608 + 32 * mt))
        def out(self):
            c = self.c
            a('s_add_u32 s%d, s%d, %d' % (S_T, S_F0, 64 * c))
            a('s_lshl_b32 s%d, s%d, 13' % (S_SA, S_T))
            a('s_add_u32 s%d, s%d, 4096' % (S_SB, S_SA))
            if c == 0:
                a('s_cmp_eq_u32 s%d, 0' % S_T)
                a('s_cselect_b32 s%d, 0x7ff00000, s%d' % (S_SB, S_SB))
            if c == 3:
                a('s_cmp_eq_u32 s%d, 224' % S_T)
                a('s_cselect_b32 s%d, 4096, s%d' % (S_SA, S_SA))
                a('s_cselect_b32 s%d, 0x7ff00000, s%d' % (S_SB, S_SB))
            for q in range(4):
                a('v_cvt_pk_bf16_f32 v%d, v%d, v%d' % (self.BR + q, self.ACC + 2 * q, self.ACC + 2 * q + 1))
                a('v_cvt_pk_bf16_f32 v%d, v%d, v%d' % (self.BI + q, self.ACC + 8 + 2 * q, self.ACC + 8 + 2 * q + 1))
            a('buffer_store_dwordx4 %s, v13, s[%d:%d], s%d offen' % (vr(self.BR, 4), SF_YT, SF_YT + 3, S_SA))
            a('buffer_store_dwordx4 %s, v13, s[%d:%d], s%d offen' % (vr(self.BI, 4), SF_YT, SF_YT + 3, S_SB))
    for p in range(2):
        A, B = Col(2 * p), Col(2 * p + 1)
        a('s_waitcnt vmcnt(%d)' % 8)
        a('s_barrier')
        stamp(a, 2 + 2 * p)
        A.reads(10, 32)
        B.reads(10, 32)
        a('s_waitcnt lgkmcnt(15)')
        a('s_waitcnt lgkmcnt(15)')
        a('s_waitcnt lgkmcnt(15)')
        A_wait = None
        a.lines.pop(); a.lines.pop(); a.lines.pop()
        a('s_waitcnt lgkmcnt(15)')
        a.lines.pop()
        if p == 0:
            issue_z(2)
            issue_z(3)
        a('s_waitcnt lgkmcnt(0)')
        if p == 1: stamp(a, 10)
        A.big(False)
        B.big(False)
        A.twiddle(False)
        A.small(False)
        B.twiddle(False)
        B.small(False)
        if p == 1: stamp(a, 11)
        a('s_waitcnt vmcnt(%d)' % (4 if p == 0 else 0))
        if p == 1: stamp(a, 12)
        a.nop(2)
        A.wmul()
        A.small(True)
        B.wmul()
        B.small(True)
        if p == 0:
            issue_w(2)
            issue_w(3)
        else:
            a.nop(2)
        if p == 1: stamp(a, 13)
        A.twiddle(True)
        A.t2write()
        B.twiddle(True)
        B.t2write()
        stamp(a, 3 + 2 * p)
    a('s_waitcnt lgkmcnt(0)')
    a('s_barrier')
    stamp(a, 6)
    for p in range(2):
        A, B = Col(2 * p), Col(2 * p + 1)
        A.reads(11, 8)
        B.reads(11, 8)
        a('s_waitcnt lgkmcnt(0)')
        A.big(True)
        B.big(True)
        A.out()
        a.nop(4)
        B.out()
        a.nop(1)
        stamp(a, 7 + p)
    a('s_waitcnt vmcnt(0)') if STAMPS else None
```

```python
from asmlib import *

import os
PREFETCH = int(os.environ.get('PREFETCH', '1'))
XN_OFF = 0
ZT_OFF = 2 << 20
YT_OFF = 4 << 20
G_OFF = 6 << 20
H_OFF = 8 << 20
XN_BYTES = 2048 * 448 * 2
ZT_BYTES = 256 * 2 * 2048 * 2
YT_BYTES = 225 * 2 * 2048 * 2
G_ROWS = 480
G_BYTES = G_ROWS * 896
H_BYTES = 2048 * 1792 * 2
WT_OFF = 16 << 20
WT_BYTES = 225 * 2 * 4096

def load_ptrs(a):
    a('s_load_dwordx16 s[16:31], s[0:1], 0')
    a('s_load_dwordx4 s[32:35], s[0:1], 64')

def mod448(a, p, t1, out):
    a('v_lshrrev_b32 v%d, 6, v%d' % (t1, p))
    a('v_mul_u32_u24 v%d, 9363, v%d' % (t1, t1))
    a('v_lshrrev_b32 v%d, 16, v%d' % (t1, t1))
    a('v_mul_u32_u24 v%d, 448, v%d' % (t1, t1))
    a('v_sub_u32 v%d, v%d, v%d' % (out, p, t1))

def gen_k0():
    a = Asm()
    PITCH = 928
    a('s_cmp_ge_u32 s2, 256')
    a('s_cbranch_scc1 L_k0_end')
    stamp(a, 0)
    load_ptrs(a)
    a('s_lshr_b32 s3, s2, 2')
    a('s_and_b32 s4, s2, 3')
    a('v_lshrrev_b32 v1, 3, v0')
    a('v_and_b32 v2, 7, v0')
    a('v_mul_u32_u24 v3, 896, v1')
    a('v_lshl_add_u32 v3, v2, 4, v3')
    a('s_mul_i32 s5, s3, 28672')
    a('s_waitcnt lgkmcnt(0)')
    a.srd(36, 16, 17, XN_BYTES)
    a.srd(40, 34, 35, XN_BYTES, XN_OFF)
    a.srd(44, 34, 35, ZT_BYTES, ZT_OFF)
    a.srd(48, 34, 35, G_BYTES, G_OFF)
    for i in range(7):
        a('buffer_load_dwordx4 %s, v3, s[36:39], s5 offen offset:%d' % (vr(8 + 4 * i, 4), 128 * i))
    a.srd(52, 18, 19, 2048 * 225 * 2)
    a.srd(56, 20, 21, 2048 * 225 * 2)
    a.srd(60, 34, 35, WT_BYTES, WT_OFF)
    a('s_lshl_b32 s8, s4, 3')
    a('s_lshl_b32 s8, s8, 6')
    a('s_add_u32 s8, s8, s3')
    a('s_mul_i32 s8, s8, 450')
    a('v_lshlrev_b32 v36, 1, v0')
    for e in range(8):
        for pl in range(2):
            a('s_add_u32 s9, s8, %d' % (e * 64 * 450))
            a('buffer_load_ushort v%d, v36, s[%d:%d], s9 offen' % (212 + 8 * pl + e, 52 + 4 * pl, 55 + 4 * pl))
    if PREFETCH:
        a('s_lshl_b32 s9, s2, 12')
        a('v_lshl_add_u32 v37, v0, 4, s9')
        a('s_mov_b32 s9, 0x100000')
        PS = [64, 68, 12]
        for m in range(3):
            a.srd(PS[m], 24 + 2 * m, 25 + 2 * m, 448 * 3584)
        for m in (2, 0, 1):
            a('buffer_load_dwordx4 %s, v37, s[%d:%d], 0 offen' % (vr(236 + 4 * m, 4), PS[m], PS[m] + 3))
            a('buffer_load_dwordx4 %s, v37, s[%d:%d], s9 offen' % (vr(248 + 4 * (m & 1), 4), PS[m], PS[m] + 3))
    a('v_and_b32 v4, 15, v0')
    a('v_lshrrev_b32 v5, 6, v0')
    a('v_lshl_add_u32 v4, v5, 4, v4')
    a('s_lshl_b32 s6, s4, 6')
    a('v_add_u32 v4, s6, v4')
    a('v_bfe_u32 v5, v0, 4, 2')
    a('v_lshlrev_b32 v5, 3, v5')
    inv448 = f32bits(1.0 / 448.0)
    a('s_mov_b32 s7, 0x%x' % inv448)
    a('v_cvt_f32_u32 v6, v4')
    a('v_mul_f32 v6, s7, v6')
    a('v_sin_f32 v7, v6')
    a('v_cos_f32 v6, v6')
    BF = 100
    C0, S0 = 44, 52
    for t in range(14):
        a('v_add_u32 v40, %d, v5' % (32 * t))
        a('v_mul_u32_u24 v41, v40, v4')
        mod448(a, 41, 42, 43)
        a('v_cvt_f32_u32 v43, v43')
        a('v_mul_f32 v43, s7, v43')
        a('v_cos_f32 v%d, v43' % C0)
        a('v_sin_f32 v%d, v43' % S0)
        a.nop(1)
        for j in range(7):
            a('v_mul_f32 v40, v%d, v7' % (S0 + j))
            a('v_mul_f32 v41, v%d, v7' % (C0 + j))
            a('v_fma_f32 v%d, v%d, v6, -v40' % (C0 + j + 1, C0 + j))
            a('v_fma_f32 v%d, v%d, v6, v41' % (S0 + j + 1, S0 + j))
        for q in range(4):
            a('v_cvt_pk_bf16_f32 v%d, v%d, v%d' % (BF + 8 * t + q, C0 + 2 * q, C0 + 2 * q + 1))
            a('v_cvt_pk_bf16_f32 v%d, -v%d, -v%d' % (BF + 8 * t + 4 + q, S0 + 2 * q, S0 + 2 * q + 1))
    stamp(a, 1)
    a('s_cmp_ge_u32 s2, 224')
    a('s_cbranch_scc1 L_k0_nog')
    a('s_mov_b32 s8, 0x%x' % f32bits(2.0 / 448.0 / 2048.0))
    a('s_cmp_eq_u32 s2, 0')
    a('s_cselect_b32 s8, 0x%x, s8' % f32bits(1.0 / 448.0 / 2048.0))
    a('s_cmp_eq_u32 s2, 224')
    a('s_cselect_b32 s8, 0x%x, s8' % f32bits(1.0 / 448.0 / 2048.0))
    a('s_cmp_gt_u32 s2, 224')
    a('s_cselect_b32 s8, 0, s8')
    a('v_cmp_gt_u32 vcc, 224, v0')
    a('s_and_saveexec_b64 s[10:11], vcc')
    a('s_cbranch_execz L_k0_g_restore')
    a('v_cmp_le_u32 vcc, 112, v0')
    a.nop(2)
    a('v_cndmask_b32 v40, 0, 1, vcc')
    a('v_mul_u32_u24 v41, 112, v40')
    a('v_sub_u32 v41, v0, v41')
    a('v_cvt_f32_u32 v42, v40')
    a('v_mul_f32 v42, 0.25, v42')
    a('v_mov_b32 v47, s2')
    a('s_cmp_lg_u32 s2, 0')
    a('s_cbranch_scc1 L_k0_g_f')
    a('v_mul_u32_u24 v47, 224, v40')
    a('v_mov_b32 v42, 0')
    a.label('L_k0_g_f')
    a('v_lshlrev_b32 v43, 2, v41')
    for e in range(4):
        a('v_add_u32 v44, %d, v43' % e)
        a('v_mul_u32_u24 v44, v47, v44')
        mod448(a, 44, 45, 46)
        a('v_cvt_f32_u32 v46, v46')
        a('v_fma_f32 v46, v46, s7, v42')
        a('v_cos_f32 v%d, v46' % (48 + e))
        a.nop(1)
        a('v_mul_f32 v%d, s8, v%d' % (48 + e, 48 + e))
    a('v_cvt_pk_bf16_f32 v52, v48, v49')
    a('v_cvt_pk_bf16_f32 v53, v50, v51')
    a('s_lshl_b32 s9, s2, 1')
    a('v_add_u32 v44, s9, v40')
    a('v_mul_u32_u24 v44, 896, v44')
    a('v_lshl_add_u32 v44, v41, 3, v44')
    a('buffer_store_dwordx2 v[52:53], v44, s[48:51], 0 offen')
    a.label('L_k0_g_restore')
    a('s_mov_b64 exec, s[10:11]')
    a.label('L_k0_nog')
    stamp(a, 2)
    F0 = 40
    a('s_waitcnt vmcnt(%d)' % (6 if PREFETCH else 0))
    stamp(a, 3)
    a('v_cmp_gt_u32 vcc, 225, v0')
    a('s_and_saveexec_b64 s[10:11], vcc')
    a('s_cbranch_execz L_k0_wt_restore')
    a('v_lshlrev_b32 v36, 13, v0')
    for pl in range(2):
        for q in range(4):
            a('v_lshl_or_b32 v%d, v%d, 16, v%d' % (228 + 4 * pl + q, 212 + 8 * pl + 2 * q + 1, 212 + 8 * pl + 2 * q))
    a('s_lshl_b32 s8, s3, 6')
    a('s_lshl_b32 s9, s4, 4')
    a('s_add_u32 s8, s8, s9')
    a('s_add_u32 s9, s8, 4096')
    a('buffer_store_dwordx4 v[228:231], v36, s[60:63], s8 offen')
    a('buffer_store_dwordx4 v[232:235], v36, s[60:63], s9 offen')
    a.label('L_k0_wt_restore')
    a('s_mov_b64 exec, s[10:11]')
    for i in range(28):
        a('v_lshlrev_b32 v%d, 16, v%d' % (F0 + 2 * i, 8 + i))
        a('v_and_b32 v%d, 0xffff0000, v%d' % (F0 + 2 * i + 1, 8 + i))
    for k in range(4):
        a('v_add_f32 v%d, v%d, v%d' % (96 + k, F0 + k, F0 + 4 + k))
    for i in range(8, 56):
        a('v_add_f32 v%d, v%d, v%d' % (96 + (i & 3), 96 + (i & 3), F0 + i))
    a('v_add_f32 v96, v96, v97')
    a('v_add_f32 v98, v98, v99')
    a('v_add_f32 v96, v96, v98')
    def red8(r):
        a.nop(2)
        a('v_add_f32_dpp v%d, v%d, v%d quad_perm:[1,0,3,2] row_mask:0xf bank_mask:0xf' % (r, r, r))
        a.nop(2)
        a('v_add_f32_dpp v%d, v%d, v%d quad_perm:[2,3,0,1] row_mask:0xf bank_mask:0xf' % (r, r, r))
        a.nop(2)
        a('v_add_f32_dpp v%d, v%d, v%d row_half_mirror row_mask:0xf bank_mask:0xf' % (r, r, r))
    red8(96)
    a('v_mul_f32 v97, s7, v96')
    a('v_mov_b32 v96, 0')
    a('v_mov_b32 v98, 0')
    for i in range(56):
        acc = 96 if (i & 1) == 0 else 98
        a('v_sub_f32 v99, v%d, v97' % (F0 + i))
        a('v_fmac_f32 v%d, v99, v99' % acc)
    a('v_add_f32 v96, v96, v98')
    red8(96)
    a('v_mul_f32 v96, s7, v96')
    a('v_cvt_pk_bf16_f32 v98, v97, v96')
    a('v_lshlrev_b32 v97, 16, v98')
    a('v_and_b32 v96, 0xffff0000, v98')
    a('v_add_f32 v96, 0x%x, v96' % f32bits(1e-5))
    a('v_cvt_pk_bf16_f32 v96, v96, v96')
    a('v_lshlrev_b32 v96, 16, v96')
    a('v_sqrt_f32 v96, v96')
    a.nop(1)
    a('v_cvt_pk_bf16_f32 v96, v96, v96')
    a('v_lshlrev_b32 v96, 16, v96')
    a('v_rcp_f32 v96, v96')
    a.nop(1)
    for i in range(28):
        x0, x1 = F0 + 2 * i, F0 + 2 * i + 1
        a('v_sub_f32 v%d, v%d, v97' % (x0, x0))
        a('v_sub_f32 v%d, v%d, v97' % (x1, x1))
        a('v_cvt_pk_bf16_f32 v99, v%d, v%d' % (x0, x1))
        a('v_lshlrev_b32 v%d, 16, v99' % x0)
        a('v_and_b32 v%d, 0xffff0000, v99' % x1)
        a('v_mul_f32 v%d, v%d, v96' % (x0, x0))
        a('v_mul_f32 v%d, v%d, v96' % (x1, x1))
        a('v_cvt_pk_bf16_f32 v%d, v%d, v%d' % (8 + i, x0, x1))
    a('v_mul_u32_u24 v98, %d, v1' % PITCH)
    a('v_lshl_add_u32 v98, v2, 4, v98')
    for i in range(7):
        a('ds_write_b128 v98, %s offset:%d' % (vr(8 + 4 * i, 4), 128 * i))
    a('s_cmp_lg_u32 s4, 0')
    a('s_cbranch_scc1 L_k0_noxn')
    for i in range(7):
        a('buffer_store_dwordx4 %s, v3, s[40:43], s5 offen offset:%d' % (vr(8 + 4 * i, 4), 128 * i))
    a.label('L_k0_noxn')
    stamp(a, 4)
    ACC = 60
    for i in range(16):
        a('v_mov_b32 v%d, 0' % (ACC + i))
    a('v_and_b32 v84, 15, v0')
    a('v_lshrrev_b32 v85, 2, v84')
    a('v_and_b32 v84, 3, v84')
    a('v_lshl_add_u32 v84, v85, 3, v84')
    a('v_mul_u32_u24 v84, %d, v84' % PITCH)
    a('v_lshl_add_u32 v84, v5, 1, v84')
    a('s_waitcnt lgkmcnt(0)')
    a('s_barrier')
    stamp(a, 5)
    AF = [76, 88]
    AF = [76, 40]
    def rd(t, buf):
        a('ds_read_b128 %s, v84 offset:%d' % (vr(buf, 4), 64 * t))
        a('ds_read_b128 %s, v84 offset:%d' % (vr(buf + 4, 4), 64 * t + 4 * PITCH))
    rd(0, AF[0])
    for t in range(14):
        cur = AF[t & 1]
        if t + 1 < 14:
            rd(t + 1, AF[(t + 1) & 1])
            a('s_waitcnt lgkmcnt(2)')
        else:
            a('s_waitcnt lgkmcnt(0)')
        for mt in range(2):
            for c in range(2):
                d = ACC + 8 * mt + 4 * c
                a('v_mfma_f32_16x16x32_bf16 %s, %s, %s, %s' % (vr(d, 4), vr(cur + 4 * mt, 4), vr(BF + 8 * t + 4 * c, 4), vr(d, 4)))
    a.nop(10)
    stamp(a, 6)
    a('v_lshlrev_b32 v85, 13, v4')
    a('v_lshl_add_u32 v85, v5, 1, v85')
    a('v_add_u32 v86, 4096, v85')
    a('s_lshl_b32 s6, s3, 6')
    for c in range(2):
        o = 88 + 4 * c
        for mt in range(2):
            d = ACC + 8 * mt + 4 * c
            a('v_cvt_pk_bf16_f32 v%d, v%d, v%d' % (o + 2 * mt, d, d + 1))
            a('v_cvt_pk_bf16_f32 v%d, v%d, v%d' % (o + 2 * mt + 1, d + 2, d + 3))
        a('buffer_store_dwordx4 %s, v%d, s[44:47], s6 offen' % (vr(o, 4), 85 + c))
    a('s_waitcnt vmcnt(0)') if STAMPS else None
    stamp(a, 7)
    dump_stamps(a, 8, 100, 'k0')
    a.label('L_k0_end')
    a('s_endpgm')
    return a.text(), 256, 32 * PITCH
```

```python
from asmlib import *
from k0 import *

def gen_k0():
    a = Asm()
    PITCH = 928
    SWG = int(os.environ.get('STAMPWG', '100'))
    inv448 = f32bits(1.0 / 448.0)
    a('s_cmp_ge_u32 s2, 256')
    a('s_cbranch_scc1 L_k0_end')
    stamp(a, 0)
    load_ptrs(a)
    a('v_lshrrev_b32 v1, 6, v0')
    a('s_lshr_b32 s3, s2, 2')
    a('s_and_b32 s4, s2, 3')
    a('v_readfirstlane_b32 s6, v1')
    a('s_mov_b32 s7, 0x%x' % inv448)
    a('s_cmp_ge_u32 s6, 4')
    a('s_cbranch_scc1 L_k0_bgen')
    a('v_lshrrev_b32 v1, 3, v0')
    a('v_and_b32 v2, 7, v0')
    a('v_mul_u32_u24 v3, 896, v1')
    a('v_lshl_add_u32 v3, v2, 4, v3')
    a('s_mul_i32 s5, s3, 28672')
    a('s_waitcnt lgkmcnt(0)')
    a.srd(36, 16, 17, XN_BYTES)
    a.srd(40, 34, 35, XN_BYTES, XN_OFF)
    a.srd(48, 34, 35, G_BYTES, G_OFF)
    for i in range(7):
        a('buffer_load_dwordx4 %s, v3, s[36:39], s5 offen offset:%d' % (vr(8 + 4 * i, 4), 128 * i))
    a.srd(52, 18, 19, 2048 * 225 * 2)
    a.srd(56, 20, 21, 2048 * 225 * 2)
    a.srd(60, 34, 35, WT_BYTES, WT_OFF)
    a('s_lshl_b32 s8, s4, 3')
    a('s_lshl_b32 s8, s8, 6')
    a('s_add_u32 s8, s8, s3')
    a('s_mul_i32 s8, s8, 450')
    a('v_lshlrev_b32 v36, 1, v0')
    for e in range(8):
        for pl in range(2):
            a('s_add_u32 s9, s8, %d' % (e * 64 * 450))
            a('buffer_load_ushort v%d, v36, s[%d:%d], s9 offen' % (112 + 8 * pl + e, 52 + 4 * pl, 55 + 4 * pl))
    if PREFETCH:
        a('s_lshl_b32 s9, s2, 12')
        a('v_lshl_add_u32 v37, v0, 4, s9')
        a('s_mov_b32 s9, 0x100000')
        PS = [64, 68, 12]
        for m in range(3):
            a.srd(PS[m], 24 + 2 * m, 25 + 2 * m, 448 * 3584)
        for m in (2, 0, 1):
            a('buffer_load_dwordx4 %s, v37, s[%d:%d], 0 offen' % (vr(136 + 4 * m, 4), PS[m], PS[m] + 3))
            a('buffer_load_dwordx4 %s, v37, s[%d:%d], s9 offen' % (vr(148 + 4 * (m & 1), 4), PS[m], PS[m] + 3))
    stamp(a, 1)
    a('s_cmp_ge_u32 s2, 224')
    a('s_cbranch_scc1 L_k0_nog')
    a('s_mov_b32 s8, 0x%x' % f32bits(2.0 / 448.0 / 2048.0))
    a('s_cmp_eq_u32 s2, 0')
    a('s_cselect_b32 s8, 0x%x, s8' % f32bits(1.0 / 448.0 / 2048.0))
    a('v_cmp_gt_u32 vcc, 224, v0')
    a('s_and_saveexec_b64 s[10:11], vcc')
    a('s_cbranch_execz L_k0_g_restore')
    a('v_cmp_le_u32 vcc, 112, v0')
    a.nop(2)
    a('v_cndmask_b32 v40, 0, 1, vcc')
    a('v_mul_u32_u24 v41, 112, v40')
    a('v_sub_u32 v41, v0, v41')
    a('v_cvt_f32_u32 v42, v40')
    a('v_mul_f32 v42, 0.25, v42')
    a('v_mov_b32 v47, s2')
    a('s_cmp_lg_u32 s2, 0')
    a('s_cbranch_scc1 L_k0_g_f')
    a('v_mul_u32_u24 v47, 224, v40')
    a('v_mov_b32 v42, 0')
    a.label('L_k0_g_f')
    a('v_lshlrev_b32 v43, 2, v41')
    for e in range(4):
        a('v_add_u32 v44, %d, v43' % e)
        a('v_mul_u32_u24 v44, v47, v44')
        mod448(a, 44, 45, 46)
        a('v_cvt_f32_u32 v46, v46')
        a('v_fma_f32 v46, v46, s7, v42')
        a('v_cos_f32 v%d, v46' % (48 + e))
        a.nop(1)
        a('v_mul_f32 v%d, s8, v%d' % (48 + e, 48 + e))
    a('v_cvt_pk_bf16_f32 v52, v48, v49')
    a('v_cvt_pk_bf16_f32 v53, v50, v51')
    a('s_lshl_b32 s9, s2, 1')
    a('v_add_u32 v44, s9, v40')
    a('v_mul_u32_u24 v44, 896, v44')
    a('v_lshl_add_u32 v44, v41, 3, v44')
    a('buffer_store_dwordx2 v[52:53], v44, s[48:51], 0 offen')
    a.label('L_k0_g_restore')
    a('s_mov_b64 exec, s[10:11]')
    a.label('L_k0_nog')
    stamp(a, 2)
    F0 = 40
    a('s_waitcnt vmcnt(%d)' % (16 + (6 if PREFETCH else 0)))
    stamp(a, 3)
    for i in range(28):
        a('v_lshlrev_b32 v%d, 16, v%d' % (F0 + 2 * i, 8 + i))
        a('v_and_b32 v%d, 0xffff0000, v%d' % (F0 + 2 * i + 1, 8 + i))
    a('v_pk_add_f32 v[96:97], %s, %s' % (vr(F0, 2), vr(F0 + 4, 2)))
    a('v_pk_add_f32 v[98:99], %s, %s' % (vr(F0 + 2, 2), vr(F0 + 6, 2)))
    for i in range(4, 28):
        acc = 96 + 2 * (i & 1)
        a('v_pk_add_f32 %s, %s, %s' % (vr(acc, 2), vr(acc, 2), vr(F0 + 2 * i, 2)))
    a('v_pk_add_f32 v[96:97], v[96:97], v[98:99]')
    a('v_add_f32 v96, v96, v97')
    def red8(r):
        a.nop(2)
        a('v_add_f32_dpp v%d, v%d, v%d quad_perm:[1,0,3,2] row_mask:0xf bank_mask:0xf' % (r, r, r))
        a.nop(2)
        a('v_add_f32_dpp v%d, v%d, v%d quad_perm:[2,3,0,1] row_mask:0xf bank_mask:0xf' % (r, r, r))
        a.nop(2)
        a('v_add_f32_dpp v%d, v%d, v%d row_half_mirror row_mask:0xf bank_mask:0xf' % (r, r, r))
    red8(96)
    a('v_mul_f32 v100, s7, v96')
    SUBM = ' op_sel_hi:[1,0] neg_lo:[0,1] neg_hi:[0,1]'
    for i in range(28):
        acc = 96 + 2 * (i & 1)
        t = 104 + 2 * (i & 3)
        a('v_pk_add_f32 %s, %s, v[100:101]%s' % (vr(t, 2), vr(F0 + 2 * i, 2), SUBM))
        if i < 2:
            a('v_pk_mul_f32 %s, %s, %s' % (vr(acc, 2), vr(t, 2), vr(t, 2)))
        else:
            a('v_pk_fma_f32 %s, %s, %s, %s' % (vr(acc, 2), vr(t, 2), vr(t, 2), vr(acc, 2)))
    a('v_pk_add_f32 v[96:97], v[96:97], v[98:99]')
    a('v_add_f32 v96, v96, v97')
    red8(96)
    a('v_mul_f32 v96, s7, v96')
    a('v_cvt_pk_bf16_f32 v98, v100, v96')
    a('v_lshlrev_b32 v100, 16, v98')
    a('v_and_b32 v96, 0xffff0000, v98')
    a('v_add_f32 v96, 0x%x, v96' % f32bits(1e-5))
    a('v_cvt_pk_bf16_f32 v96, v96, v96')
    a('v_lshlrev_b32 v96, 16, v96')
    a('v_sqrt_f32 v96, v96')
    a.nop(1)
    a('v_cvt_pk_bf16_f32 v96, v96, v96')
    a('v_lshlrev_b32 v96, 16, v96')
    a('v_rcp_f32 v102, v96')
    a.nop(1)
    for i in range(28):
        x0 = F0 + 2 * i
        a('v_pk_add_f32 %s, %s, v[100:101]%s' % (vr(x0, 2), vr(x0, 2), SUBM))
        a('v_cvt_pk_bf16_f32 v99, v%d, v%d' % (x0, x0 + 1))
        a('v_lshlrev_b32 v%d, 16, v99' % x0)
        a('v_and_b32 v%d, 0xffff0000, v99' % (x0 + 1))
        a('v_pk_mul_f32 %s, %s, v[102:103] op_sel_hi:[1,0]' % (vr(x0, 2), vr(x0, 2)))
        a('v_cvt_pk_bf16_f32 v%d, v%d, v%d' % (8 + i, x0, x0 + 1))
    a('v_mul_u32_u24 v98, %d, v1' % PITCH)
    a('v_lshl_add_u32 v98, v2, 4, v98')
    for i in range(7):
        a('ds_write_b128 v98, %s offset:%d' % (vr(8 + 4 * i, 4), 128 * i))
    a('s_waitcnt lgkmcnt(0)')
    stamp(a, 4)
    a('s_barrier')
    a('s_waitcnt vmcnt(%d)' % (6 if PREFETCH else 0))
    a('v_cmp_gt_u32 vcc, 225, v0')
    a('s_and_saveexec_b64 s[10:11], vcc')
    a('s_cbranch_execz L_k0_wt_restore')
    a('v_lshlrev_b32 v36, 13, v0')
    for pl in range(2):
        for q in range(4):
            a('v_lshl_or_b32 v%d, v%d, 16, v%d' % (128 + 4 * pl + q, 112 + 8 * pl + 2 * q + 1, 112 + 8 * pl + 2 * q))
    a('s_lshl_b32 s8, s3, 6')
    a('s_lshl_b32 s9, s4, 4')
    a('s_add_u32 s8, s8, s9')
    a('s_add_u32 s9, s8, 4096')
    a('buffer_store_dwordx4 v[128:131], v36, s[60:63], s8 offen')
    a('buffer_store_dwordx4 v[132:135], v36, s[60:63], s9 offen')
    a.label('L_k0_wt_restore')
    a('s_mov_b64 exec, s[10:11]')
    a('s_cmp_lg_u32 s4, 0')
    a('s_cbranch_scc1 L_k0_noxn')
    for i in range(7):
        a('buffer_store_dwordx4 %s, v3, s[40:43], s5 offen offset:%d' % (vr(8 + 4 * i, 4), 128 * i))
    a.label('L_k0_noxn')
    stamp(a, 5)
    if os.environ.get('WAVEST0'): dump_wave_stamps(a, [0, 3, 4, 5], SWG, 'k0a')
    a('s_endpgm')
    a.label('L_k0_bgen')
    a('v_and_b32 v4, 15, v0')
    a('v_bfe_u32 v5, v0, 6, 2')
    a('v_lshl_add_u32 v4, v5, 4, v4')
    a('s_lshl_b32 s6, s4, 6')
    a('v_add_u32 v4, s6, v4')
    a('v_bfe_u32 v5, v0, 4, 2')
    a('v_lshlrev_b32 v5, 3, v5')
    BF = 100
    CA, SA, CB, SB = 40, 48, 56, 64
    P2, P4, P32 = 72, 74, 76
    def evalcs(dc, ds, t):
        mod448(a, t, t + 1, t + 2)
        a('v_cvt_f32_u32 v%d, v%d' % (t + 2, t + 2))
        a('v_mul_f32 v%d, s7, v%d' % (t + 2, t + 2))
        a('v_cos_f32 v%d, v%d' % (dc, t + 2))
        a('v_sin_f32 v%d, v%d' % (ds, t + 2))
    a('v_mul_u32_u24 v80, v5, v4')
    a('v_add_u32 v83, v80, v4')
    a('v_lshlrev_b32 v86, 1, v4')
    a('v_lshlrev_b32 v89, 2, v4')
    a('v_lshlrev_b32 v92, 5, v4')
    evalcs(CA, SA, 80)
    evalcs(CA + 1, SA + 1, 83)
    evalcs(P2, P2 + 1, 86)
    evalcs(P4, P4 + 1, 89)
    evalcs(P32, P32 + 1, 92)
    a.nop(1)
    def rotblk(Cd, Sd, Cs, Ss, P):
        a('v_pk_mul_f32 %s, %s, %s op_sel:[0,0] op_sel_hi:[1,0]' % (vr(Cd, 2), vr(Cs, 2), vr(P, 2)))
        a('v_pk_mul_f32 %s, %s, %s op_sel:[0,0] op_sel_hi:[1,0]' % (vr(Sd, 2), vr(Ss, 2), vr(P, 2)))
        a('v_pk_fma_f32 %s, %s, %s, %s op_sel:[0,1,0] op_sel_hi:[1,1,1] neg_lo:[1,0,0] neg_hi:[1,0,0]' % (vr(Cd, 2), vr(Ss, 2), vr(P, 2), vr(Cd, 2)))
        a('v_pk_fma_f32 %s, %s, %s, %s op_sel:[0,1,0] op_sel_hi:[1,1,1]' % (vr(Sd, 2), vr(Cs, 2), vr(P, 2), vr(Sd, 2)))
    rotblk(CA + 2, SA + 2, CA, SA, P2)
    rotblk(CA + 4, SA + 4, CA, SA, P4)
    rotblk(CA + 6, SA + 6, CA + 2, SA + 2, P4)
    bufs = [(CA, SA), (CB, SB)]
    for t in range(14):
        C0, S0 = bufs[t & 1]
        C1, S1 = bufs[(t + 1) & 1]
        if t == 7:
            pass
        if t + 1 < 14:
            for q in range(4):
                rotblk(C1 + 2 * q, S1 + 2 * q, C0 + 2 * q, S0 + 2 * q, P32)
        for q in range(4):
            a('v_cvt_pk_bf16_f32 v%d, v%d, v%d' % (BF + 8 * t + q, C0 + 2 * q, C0 + 2 * q + 1))
            a('v_cvt_pk_bf16_f32 v%d, -v%d, -v%d' % (BF + 8 * t + 4 + q, S0 + 2 * q, S0 + 2 * q + 1))
    stamp(a, 3)
    ACC = 80
    a('v_and_b32 v36, 15, v0')
    a('v_lshrrev_b32 v37, 2, v36')
    a('v_and_b32 v36, 3, v36')
    a('v_lshl_add_u32 v36, v37, 3, v36')
    a('v_mul_u32_u24 v36, %d, v36' % PITCH)
    a('v_lshl_add_u32 v36, v5, 1, v36')
    a('v_lshlrev_b32 v37, 13, v4')
    a('v_lshl_add_u32 v37, v5, 1, v37')
    a('v_add_u32 v38, 4096, v37')
    a('s_lshl_b32 s6, s3, 6')
    a('s_waitcnt lgkmcnt(0)')
    a.srd(44, 34, 35, ZT_BYTES, ZT_OFF)
    a('s_barrier')
    stamp(a, 4)
    AF = [8, 16, 24]
    def rd(t):
        buf = AF[t % 3]
        a('ds_read_b128 %s, v36 offset:%d' % (vr(buf, 4), 64 * t))
        a('ds_read_b128 %s, v36 offset:%d' % (vr(buf + 4, 4), 64 * t + 4 * PITCH))
    rd(0)
    rd(1)
    for t in range(14):
        cur = AF[t % 3]
        if t + 2 < 14:
            rd(t + 2)
            a('s_waitcnt lgkmcnt(4)')
        elif t + 1 < 14:
            a('s_waitcnt lgkmcnt(2)')
        else:
            a('s_waitcnt lgkmcnt(0)')
        for mt in range(2):
            for c in range(2):
                d = ACC + 8 * mt + 4 * c
                a('v_mfma_f32_16x16x32_bf16 %s, %s, %s, %s' % (vr(d, 4), vr(cur + 4 * mt, 4), vr(BF + 8 * t + 4 * c, 4), '0' if t == 0 else vr(d, 4)))
    a.nop(10)
    for c in range(2):
        o = 40 + 4 * c
        for mt in range(2):
            d = ACC + 8 * mt + 4 * c
            a('v_cvt_pk_bf16_f32 v%d, v%d, v%d' % (o + 2 * mt, d, d + 1))
            a('v_cvt_pk_bf16_f32 v%d, v%d, v%d' % (o + 2 * mt + 1, d + 2, d + 3))
        a('buffer_store_dwordx4 %s, v%d, s[44:47], s6 offen' % (vr(o, 4), 37 + c))
    a('s_waitcnt vmcnt(0)') if STAMPS else None
    stamp(a, 5)
    if os.environ.get('WAVEST0'): dump_wave_stamps(a, [0, 3, 4, 5], SWG, 'k0b')
    a.label('L_k0_end')
    a('s_endpgm')
    return a.text(), 212, 32 * PITCH
```

```python
from asmlib import *
from k0 import *
import fft
EXP = int(os.environ.get('EXP', '0'))

def gelu_epilogue(a, ACC, T, OUT, store):
    for v in range(2):
        for p in range(8):
            g0, g1 = ACC + 16 * v + 2 * p, ACC + 16 * v + 2 * p + 1
            u0, u1 = g0 + 32, g1 + 32
            a('v_cvt_pk_bf16_f32 v%d, v%d, v%d' % (T, g0, g1))
            a('v_cvt_pk_bf16_f32 v%d, v%d, v%d' % (T + 1, u0, u1))
            a('v_lshlrev_b32 v%d, 16, v%d' % (g0, T))
            a('v_and_b32 v%d, 0xffff0000, v%d' % (g1, T))
            a('v_lshlrev_b32 v%d, 16, v%d' % (u0, T + 1))
            a('v_and_b32 v%d, 0xffff0000, v%d' % (u1, T + 1))
            for k, g in enumerate((g0, g1)):
                a('v_mul_f32 v%d, v%d, v%d' % (T + 2 + k, g, g))
            for k, g in enumerate((g0, g1)):
                a('v_fma_f32 v%d, v%d, s12, 1.0' % (T + 2 + k, T + 2 + k))
            for k, g in enumerate((g0, g1)):
                a('v_mul_f32 v%d, v%d, v%d' % (T + 2 + k, T + 2 + k, g))
            for k, g in enumerate((g0, g1)):
                a('v_mul_f32 v%d, s13, v%d' % (T + 2 + k, T + 2 + k))
            for k, g in enumerate((g0, g1)):
                a('v_exp_f32 v%d, v%d' % (T + 2 + k, T + 2 + k))
            a.nop(1)
            for k, g in enumerate((g0, g1)):
                a('v_add_f32 v%d, 1.0, v%d' % (T + 2 + k, T + 2 + k))
            for k, g in enumerate((g0, g1)):
                a('v_rcp_f32 v%d, v%d' % (T + 2 + k, T + 2 + k))
            a.nop(1)
            for k, g in enumerate((g0, g1)):
                a('v_mul_f32 v%d, v%d, v%d' % (T + 2 + k, T + 2 + k, g))
            a('v_cvt_pk_bf16_f32 v%d, v%d, v%d' % (T, T + 2, T + 3))
            a('v_lshlrev_b32 v%d, 16, v%d' % (T + 2, T))
            a('v_and_b32 v%d, 0xffff0000, v%d' % (T + 3, T))
            a('v_mul_f32 v%d, v%d, v%d' % (T + 2, T + 2, u0))
            a('v_mul_f32 v%d, v%d, v%d' % (T + 3, T + 3, u1))
            a('v_cvt_pk_bf16_f32 v%d, v%d, v%d' % (OUT + 8 * v + p, T + 2, T + 3))
        for hh in range(2):
            store(v, hh, OUT + 8 * v + 4 * hh)

def gen_k1():
    a = Asm()
    NS = 3
    STG = 49152
    BOFF = 32768
    UPO = 8192
    LBF = NS * STG
    VD, VA0, VA1 = 190, 191, 192
    a('s_cmp_ge_u32 s2, 225')
    a('s_cbranch_scc1 L_k1_end')
    stamp(a, 0)
    load_ptrs(a)
    a('v_lshrrev_b32 v1, 6, v0')
    a('v_and_b32 v2, 63, v0')
    a('v_readfirstlane_b32 s3, v1')
    a('s_and_b32 s4, s2, 7')
    a('s_lshr_b32 s5, s2, 3')
    a('s_lshr_b32 s6, s4, 2')
    a('s_and_b32 s7, s4, 3')
    a('s_lshl_b32 s6, s6, 2')
    a('s_and_b32 s8, s5, 3')
    a('s_add_u32 s4, s6, s8')
    a('s_mul_i32 s7, s7, 7')
    a('s_lshr_b32 s5, s5, 2')
    a('s_add_u32 s5, s7, s5')
    a('s_mul_i32 s6, s4, 229376')
    a('v_lshrrev_b32 v5, 3, v2')
    a('v_lshl_add_u32 v5, v1, 5, v5')
    a('v_mul_u32_u24 v5, 896, v5')
    a('v_and_b32 v7, 7, v2')
    a('v_lshrrev_b32 v8, 4, v2')
    a('v_xor_b32 v8, v7, v8')
    a('v_lshl_add_u32 v%d, v8, 4, v5' % VA0)
    a('v_xor_b32 v8, 4, v8')
    a('v_lshl_add_u32 v%d, v8, 4, v5' % VA1)
    a('v_add_u32 v%d, 7168, v%d' % (VA1, VA1))
    a('v_lshrrev_b32 v6, 3, v2')
    a('v_lshl_add_u32 v6, v1, 3, v6')
    a('v_mul_u32_u24 v6, 3584, v6')
    a('v_bfe_u32 v8, v2, 4, 1')
    a('v_lshlrev_b32 v8, 2, v8')
    a('v_xor_b32 v7, v7, v8')
    a('v_lshl_add_u32 v%d, v7, 4, v6' % VD)
    a('s_lshl_b32 s7, s5, 7')
    a('s_lshl_b32 s8, s3, 10')
    a('s_lshl_b32 s11, s3, 12')
    a('s_waitcnt lgkmcnt(0)')
    a.srd(36, 34, 35, XN_BYTES, XN_OFF)
    a.srd(40, 24, 25, 448 * 3584)
    a.srd(44, 26, 27, 448 * 3584)
    a.srd(48, 34, 35, H_BYTES, H_OFF)
    def issue(c):
        sb = (c % NS) * STG
        a('s_add_u32 s9, s7, %d' % (c * 229376))
        a('s_add_u32 s10, s8, %d' % (sb + BOFF))
        a('s_mov_b32 m0, s10')
        a('s_add_u32 s10, s10, %d' % UPO)
        a('buffer_load_dwordx4 v%d, s[40:43], s9 offen lds' % VD)
        a('s_mov_b32 m0, s10')
        a('s_add_u32 s14, s6, %d' % (c * 128))
        a('buffer_load_dwordx4 v%d, s[44:47], s9 offen lds' % VD)
        for q in range(4):
            a('s_add_u32 s10, s11, %d' % (sb + q * 1024))
            a('s_mov_b32 m0, s10')
            if q == 2:
                a('s_add_u32 s14, s14, 14336')
            else:
                a.nop(1)
            a('buffer_load_dwordx4 v%d, s[36:39], s14 offen lds' % (VA0 + (q & 1)))
    a('s_cmp_ge_u32 s3, 4')
    a('s_cbranch_scc1 L_k1_nofft')
    fft.fft_issue(a, LBF, 3, 2)
    for c in range(NS - 1):
        issue(c)
    stamp(a, 1)
    fft.fft_compute(a, LBF, 2, 4 + 12, 12, 'k1')
    a('s_branch L_k1_gemm')
    a.label('L_k1_nofft')
    for c in range(NS - 1):
        issue(c)
    a('s_barrier')
    a('s_barrier')
    a.label('L_k1_gemm')
    a('s_cmp_lt_u32 s2, 224')
    a('s_cbranch_scc1 L_k1_gemm2')
    a('s_waitcnt vmcnt(0)')
    a('s_endpgm')
    a.label('L_k1_gemm2')
    a('v_lshrrev_b32 v1, 6, v0')
    a('v_and_b32 v2, 63, v0')
    a('v_and_b32 v3, 31, v2')
    a('v_lshl_add_u32 v3, v1, 5, v3')
    a('v_lshrrev_b32 v4, 5, v2')
    a('v_lshrrev_b32 v8, 4, v2')
    a('v_and_b32 v9, 15, v2')
    a('v_lshrrev_b32 v10, 2, v9')
    a('v_and_b32 v11, 3, v9')
    a('v_lshrrev_b32 v12, 1, v8')
    a('v_lshl_add_u32 v12, v12, 3, v10')
    a('v_lshlrev_b32 v12, 7, v12')
    a('v_and_b32 v13, 1, v11')
    a('v_lshlrev_b32 v13, 1, v13')
    a('v_and_b32 v14, 1, v8')
    a('v_add_u32 v13, v13, v14')
    a('v_lshrrev_b32 v14, 1, v10')
    a('v_lshl_add_u32 v13, v14, 2, v13')
    a('v_lshl_add_u32 v12, v13, 4, v12')
    a('v_lshrrev_b32 v14, 1, v11')
    a('v_lshl_add_u32 v16, v14, 3, v12')
    a('v_xor_b32 v17, 64, v16')
    VB = 24
    for s in range(NS):
        a('v_add_u32 v%d, %d, v16' % (VB + 2 * s, s * STG + BOFF))
        a('v_add_u32 v%d, %d, v17' % (VB + 2 * s + 1, s * STG + BOFF))
    VX = 96
    a('v_bfe_u32 v9, v3, 1, 3')
    for kk in range(4):
        a('v_add_u32 v10, %d, v4' % (2 * kk))
        a('v_xor_b32 v10, v10, v9')
        a('v_lshlrev_b32 v10, 4, v10')
        a('v_lshl_add_u32 v10, v3, 7, v10')
        for s in range(NS):
            a('v_add_u32 v%d, %d, v10' % (VX + 4 * s + kk, s * STG))
    WF = [32, 52]
    ACC = 112
    for i in range(64):
        a('v_mov_b32 v%d, 0' % (ACC + i))
    def rd(s, kk, buf):
        if EXP == 2: return
        if EXP == 4:
            for u in range(5):
                a('ds_read_b128 %s, v%d' % (vr(buf + 4 * u, 4), VX + 4 * s + kk))
            return
        a('ds_read_b128 %s, v%d' % (vr(buf + 16, 4), VX + 4 * s + kk))
        for u in range(4):
            for h in range(2):
                a('ds_read_b64_tr_b16 %s, v%d offset:%d' % (vr(buf + 4 * u + 2 * h, 2), VB + 2 * s + (u & 1), (u >> 1) * UPO + kk * 2048 + h * 512))
    for c in range(7):
        s = c % NS
        later = min(NS - 2, 6 - c)
        a('s_waitcnt vmcnt(%d)' % (6 * later))
        a('s_barrier')
        stamp(a, 2 + c)
        if c + NS - 1 < 7 and EXP != 1:
            issue(c + NS - 1)
        rd(s, 0, WF[0])
        for kk in range(4):
            cur = WF[kk & 1]
            if kk < 3:
                rd(s, kk + 1, WF[(kk + 1) & 1])
                a('s_waitcnt lgkmcnt(9)')
            else:
                a('s_waitcnt lgkmcnt(0)')
            for u in range(4):
                d = ACC + 16 * u
                if EXP == 3: continue
                a('v_mfma_f32_32x32x16_bf16 %s, %s, %s, %s' % (vr(d, 16), vr(cur + 4 * u, 4), vr(cur + 16, 4), vr(d, 16)))
    a.nop(14)
    stamp(a, 9)
    a('s_mov_b32 s12, 0x%x' % f32bits(0.044715))
    a('s_mov_b32 s13, 0x%x' % f32bits(-2.0 * 0.7978845608028654 * 1.4426950408889634))
    a('v_mul_u32_u24 v5, 3584, v3')
    a('v_lshl_add_u32 v5, v4, 5, v5')
    a('s_mul_i32 s14, s4, %d' % (256 * 3584))
    a('s_add_u32 s14, s14, s7')
    def store(v, hh, reg):
        a('buffer_store_dwordx4 %s, v5, s[48:51], s14 offen offset:%d' % (vr(reg, 4), 64 * v + 16 * hh))
    gelu_epilogue(a, ACC, 32, 64, store)
    stamp(a, 10)
    a('s_waitcnt vmcnt(0)') if STAMPS else None
    stamp(a, 11)
    dump_stamps(a, 12, 100, 'k1')
    a.label('L_k1_end')
    a('s_endpgm')
    return a.text(), 196, NS * STG + 16384
```

```python
from asmlib import *
from k0 import *
import fft3 as fft2
EXP = int(os.environ.get('EXP', '0'))

def gelu_epilogue(a, ACC, T, OUT, store):
    for v in range(2):
        for p in range(8):
            g0, g1 = ACC + 16 * v + 2 * p, ACC + 16 * v + 2 * p + 1
            u0, u1 = g0 + 32, g1 + 32
            a('v_cvt_pk_bf16_f32 v%d, v%d, v%d' % (T, g0, g1))
            a('v_cvt_pk_bf16_f32 v%d, v%d, v%d' % (T + 1, u0, u1))
            a('v_lshlrev_b32 v%d, 16, v%d' % (g0, T))
            a('v_and_b32 v%d, 0xffff0000, v%d' % (g1, T))
            a('v_lshlrev_b32 v%d, 16, v%d' % (u0, T + 1))
            a('v_and_b32 v%d, 0xffff0000, v%d' % (u1, T + 1))
            for k, g in enumerate((g0, g1)):
                a('v_mul_f32 v%d, v%d, v%d' % (T + 2 + k, g, g))
            for k, g in enumerate((g0, g1)):
                a('v_fma_f32 v%d, v%d, s12, 1.0' % (T + 2 + k, T + 2 + k))
            for k, g in enumerate((g0, g1)):
                a('v_mul_f32 v%d, v%d, v%d' % (T + 2 + k, T + 2 + k, g))
            for k, g in enumerate((g0, g1)):
                a('v_mul_f32 v%d, s13, v%d' % (T + 2 + k, T + 2 + k))
            for k, g in enumerate((g0, g1)):
                a('v_exp_f32 v%d, v%d' % (T + 2 + k, T + 2 + k))
            a.nop(1)
            for k, g in enumerate((g0, g1)):
                a('v_add_f32 v%d, 1.0, v%d' % (T + 2 + k, T + 2 + k))
            for k, g in enumerate((g0, g1)):
                a('v_rcp_f32 v%d, v%d' % (T + 2 + k, T + 2 + k))
            a.nop(1)
            for k, g in enumerate((g0, g1)):
                a('v_mul_f32 v%d, v%d, v%d' % (T + 2 + k, T + 2 + k, g))
            a('v_cvt_pk_bf16_f32 v%d, v%d, v%d' % (T, T + 2, T + 3))
            a('v_lshlrev_b32 v%d, 16, v%d' % (T + 2, T))
            a('v_and_b32 v%d, 0xffff0000, v%d' % (T + 3, T))
            a('v_mul_f32 v%d, v%d, v%d' % (T + 2, T + 2, u0))
            a('v_mul_f32 v%d, v%d, v%d' % (T + 3, T + 3, u1))
            a('v_cvt_pk_bf16_f32 v%d, v%d, v%d' % (OUT + 8 * v + p, T + 2, T + 3))
        for hh in range(2):
            store(v, hh, OUT + 8 * v + 4 * hh)

def gen_k1():
    a = Asm()
    NS = 3
    STG = 49152
    BOFF = 32768
    UPO = 8192
    SWG = int(os.environ.get('STAMPWG', '100'))
    VD, VA0, VA1 = 6, 20, 21
    a('s_cmp_ge_u32 s2, 256')
    a('s_cbranch_scc1 L_k1_end')
    stamp(a, 0)
    load_ptrs(a)
    a('v_lshrrev_b32 v1, 6, v0')
    a('v_and_b32 v2, 63, v0')
    a('v_readfirstlane_b32 s3, v1')
    a('s_cmp_ge_u32 s2, 32')
    a('s_cbranch_scc1 L_k1_gemm')
    a('s_mov_b32 s4, s2')
    a('s_waitcnt lgkmcnt(0)')
    fft2.fft_wg(a, 3, 4)
    stamp(a, 9)
    if os.environ.get('WAVEST'): dump_wave_stamps(a, [int(x) for x in os.environ['WAVEST'].split(',')], SWG, 'k1f')
    else: dump_stamps(a, 12, SWG, 'k1f')
    a('s_endpgm')
    a.label('L_k1_gemm')
    a('s_and_b32 s4, s2, 7')
    a('s_lshr_b32 s5, s2, 3')
    a('s_sub_u32 s5, s5, 4')
    a('s_lshr_b32 s6, s4, 2')
    a('s_and_b32 s7, s4, 3')
    a('s_lshl_b32 s6, s6, 2')
    a('s_and_b32 s8, s5, 3')
    a('s_add_u32 s4, s6, s8')
    a('s_mul_i32 s7, s7, 7')
    a('s_lshr_b32 s5, s5, 2')
    a('s_add_u32 s5, s7, s5')
    a('v_and_b32 v3, 31, v2')
    a('v_lshl_add_u32 v3, v1, 5, v3')
    a('v_lshrrev_b32 v4, 5, v2')
    a('s_mul_i32 s6, s4, 229376')
    a('v_lshrrev_b32 v5, 3, v2')
    a('v_lshl_add_u32 v5, v1, 5, v5')
    a('v_mul_u32_u24 v5, 896, v5')
    a('v_and_b32 v7, 7, v2')
    a('v_lshrrev_b32 v8, 4, v2')
    a('v_xor_b32 v8, v7, v8')
    a('v_lshl_add_u32 v%d, v8, 4, v5' % VA0)
    a('v_xor_b32 v8, 4, v8')
    a('v_lshl_add_u32 v%d, v8, 4, v5' % VA1)
    a('v_add_u32 v%d, 7168, v%d' % (VA1, VA1))
    a('v_lshrrev_b32 v6, 3, v2')
    a('v_lshl_add_u32 v6, v1, 3, v6')
    a('v_mul_u32_u24 v6, 3584, v6')
    a('v_bfe_u32 v8, v2, 4, 1')
    a('v_lshlrev_b32 v8, 2, v8')
    a('v_xor_b32 v7, v7, v8')
    a('v_lshl_add_u32 v%d, v7, 4, v6' % VD)
    a('s_lshl_b32 s7, s5, 7')
    a('s_lshl_b32 s8, s3, 10')
    a('s_lshl_b32 s11, s3, 12')
    a('s_waitcnt lgkmcnt(0)')
    a.srd(36, 34, 35, XN_BYTES, XN_OFF)
    a.srd(40, 24, 25, 448 * 3584)
    a.srd(44, 26, 27, 448 * 3584)
    a.srd(48, 34, 35, H_BYTES, H_OFF)
    def issue_groups(c):
        sb = (c % NS) * STG
        g = []
        g.append(['s_add_u32 s9, s7, %d' % (c * 229376),
                  's_add_u32 s10, s8, %d' % (sb + BOFF),
                  's_mov_b32 m0, s10',
                  's_add_u32 s10, s10, %d' % UPO,
                  'buffer_load_dwordx4 v%d, s[40:43], s9 offen lds' % VD])
        g.append(['s_mov_b32 m0, s10',
                  's_add_u32 s14, s6, %d' % (c * 128),
                  'buffer_load_dwordx4 v%d, s[44:47], s9 offen lds' % VD])
        for q in range(4):
            g.append(['s_add_u32 s10, s11, %d' % (sb + q * 1024),
                      's_mov_b32 m0, s10',
                      's_add_u32 s14, s14, 14336' if q == 2 else 's_nop 0',
                      'buffer_load_dwordx4 v%d, s[36:39], s14 offen lds' % (VA0 + (q & 1))])
        return g
    for g in issue_groups(0):
        for ln in g: a(ln)
    stamp(a, 1)
    a('v_lshrrev_b32 v8, 4, v2')
    a('v_and_b32 v9, 15, v2')
    a('v_lshrrev_b32 v10, 2, v9')
    a('v_and_b32 v11, 3, v9')
    a('v_lshrrev_b32 v12, 1, v8')
    a('v_lshl_add_u32 v12, v12, 3, v10')
    a('v_lshlrev_b32 v12, 7, v12')
    a('v_and_b32 v13, 1, v11')
    a('v_lshlrev_b32 v13, 1, v13')
    a('v_and_b32 v14, 1, v8')
    a('v_add_u32 v13, v13, v14')
    a('v_lshrrev_b32 v14, 1, v10')
    a('v_lshl_add_u32 v13, v14, 2, v13')
    a('v_lshl_add_u32 v12, v13, 4, v12')
    a('v_lshrrev_b32 v14, 1, v11')
    a('v_lshl_add_u32 v16, v14, 3, v12')
    a('v_xor_b32 v17, 64, v16')
    VB = 24
    for s in range(NS):
        a('v_add_u32 v%d, %d, v16' % (VB + 2 * s, s * STG + BOFF))
        a('v_add_u32 v%d, %d, v17' % (VB + 2 * s + 1, s * STG + BOFF))
    VX = 96
    a('v_bfe_u32 v9, v3, 1, 3')
    for kk in range(4):
        a('v_add_u32 v10, %d, v4' % (2 * kk))
        a('v_xor_b32 v10, v10, v9')
        a('v_lshlrev_b32 v10, 4, v10')
        a('v_lshl_add_u32 v10, v3, 7, v10')
        for s in range(NS):
            a('v_add_u32 v%d, %d, v10' % (VX + 4 * s + kk, s * STG))
    WF = [32, 52]
    ACC = 112
    for i in range(64):
        a('v_mov_b32 v%d, 0' % (ACC + i))
    def rd(s, kk, buf):
        if EXP == 2: return
        if EXP == 4:
            for u in range(5):
                a('ds_read_b128 %s, v%d' % (vr(buf + 4 * u, 4), VX + 4 * s + kk))
            return
        a('ds_read_b128 %s, v%d' % (vr(buf + 16, 4), VX + 4 * s + kk))
        for u in range(4):
            for h in range(2):
                a('ds_read_b64_tr_b16 %s, v%d offset:%d' % (vr(buf + 4 * u + 2 * h, 2), VB + 2 * s + (u & 1), (u >> 1) * UPO + kk * 2048 + h * 512))
    for g in issue_groups(1):
        for ln in g: a(ln)
    a('s_waitcnt vmcnt(6)')
    a('s_barrier')
    rd(0, 0, WF[0])
    for c in range(7):
        s = c % NS
        stamp(a, 2 + c)
        groups = issue_groups(c + 2) if (c + 2 < 7 and EXP != 1) else []
        for kk in range(4):
            cur = WF[kk & 1]
            if kk < 3:
                rd(s, kk + 1, WF[(kk + 1) & 1])
                a('s_waitcnt lgkmcnt(9)')
            else:
                a('s_waitcnt lgkmcnt(0)')
                if c + 1 < 7:
                    a('s_waitcnt vmcnt(%d)' % (6 if c + 2 < 7 else 0))
                    a('s_barrier')
                    rd((c + 1) % NS, 0, WF[0])
            for u in range(4):
                d = ACC + 16 * u
                if EXP != 3:
                    a('v_mfma_f32_32x32x16_bf16 %s, %s, %s, %s' % (vr(d, 16), vr(cur + 4 * u, 4), vr(cur + 16, 4), vr(d, 16)))
                if groups and kk < 3 and u in (0, 2):
                    for ln in groups.pop(0): a(ln)
    a.nop(14)
    stamp(a, 9)
    a('s_mov_b32 s12, 0x%x' % f32bits(0.044715))
    a('s_mov_b32 s13, 0x%x' % f32bits(-2.0 * 0.7978845608028654 * 1.4426950408889634))
    a('v_mul_u32_u24 v5, 3584, v3')
    a('v_lshl_add_u32 v5, v4, 5, v5')
    a('s_mul_i32 s14, s4, %d' % (256 * 3584))
    a('s_add_u32 s14, s14, s7')
    def store(v, hh, reg):
        a('buffer_store_dwordx4 %s, v5, s[48:51], s14 offen offset:%d' % (vr(reg, 4), 64 * v + 16 * hh))
    gelu_epilogue(a, ACC, 32, 64, store)
    stamp(a, 10)
    a('s_waitcnt vmcnt(0)') if STAMPS else None
    stamp(a, 11)
    if os.environ.get('WAVEST'): dump_wave_stamps(a, [0, 1, 2, 9], SWG, 'k1')
    else: dump_stamps(a, 12, SWG, 'k1')
    a.label('L_k1_end')
    a('s_endpgm')
    return a.text(), 256, NS * STG
```

```python
import sys, os
import asmlib
asmlib.STAMPS = bool(os.environ.get('STAMPS'))
from asmlib import *
import k0, k1, k2, k3, k1f, k1g, k0b, k0c

HEADER = open('parallel_sum__spectral_gfnet__glu_gated_geglu__prompt.s.ref').read().split('; Override launch')[0]

def build(kernels, path):
    s = HEADER
    for name, body, vg, grid, block, lds in kernels:
        s += '; @launch kernel=%s grid=(%d,1,1) block=(%d,1,1) lds=%d\n' % (name, grid, block, lds)
    s += '.amdgcn_target "amdgcn-amd-amdhsa--gfx950"\n.text\n'
    seen = set()
    for name, body, vg, grid, block, lds in kernels:
        if name in seen: continue
        seen.add(name)
        s += kernel_header(name) + body
    s += '.section .rodata,"a"\n'
    seen = set()
    for name, body, vg, grid, block, lds in kernels:
        if name in seen: continue
        seen.add(name)
        s += '.p2align 6\n' + kernel_desc(name, vg)
    open(path, 'w').write(s)

if __name__ == '__main__':
    ks = []
    b, vg, lds = k0c.gen_k0()
    ks.append(('k0_kernel', b, vg, 256, 512, lds))
    if os.environ.get('NOFUSE'):
        b, vg, lds = k2.gen_k2()
        ks.append(('k2_kernel', b, vg, 225, 256, lds))
        b, vg, lds = k1.gen_k1()
        ks.append(('k1_kernel', b, vg, 224, 512, lds))
    else:
        b, vg, lds = k1g.gen_k1()
        ks.append(('k1_kernel', b, vg, 256, 512, lds))
    b, vg, lds = k3.gen_k3()
    ks.append(('k3_kernel', b, vg, 224, 512, lds))
    build(ks, sys.argv[1] if len(sys.argv) > 1 else 'cur.s')
```

```python
from asmlib import *
from k0 import *

def cs(a, dc, ds, idx, sc, tmp):
    a('v_cvt_f32_u32 v%d, v%d' % (tmp, idx))
    a('v_mul_f32 v%d, s%d, v%d' % (tmp, sc, tmp))
    a('v_cos_f32 v%d, v%d' % (dc, tmp))
    a('v_sin_f32 v%d, v%d' % (ds, tmp))

SF_ZT, SF_YT, SF_WT = 52, 56, 60
S_F0, S_LB, S_T, S_T2, S_I64, S_I32, S_I2K = 64, 65, 66, 67, 68, 69, 70
S_SA, S_SB = 71, 72
WPB = [224, 240]
NR = 4

def fft_wg(a, sw, sq):
    a('v_and_b32 v6, 15, v0')
    a('v_bfe_u32 v1, v0, 6, 2')
    a('v_lshl_add_u32 v4, v1, 4, v6')
    a('v_bfe_u32 v5, v0, 4, 2')
    a('v_and_b32 v2, 255, v0')
    a('v_bfe_u32 v3, v0, 5, 1')
    a('v_lshlrev_b32 v3, 1, v3')
    a('v_xor_b32 v2, v2, v3')
    a('v_lshlrev_b32 v2, 4, v2')
    a('s_lshr_b32 s%d, s%d, 2' % (S_T, sw))
    a('s_lshl_b32 s%d, s%d, 1' % (S_F0, sq))
    a('s_add_u32 s%d, s%d, s%d' % (S_F0, S_F0, S_T))
    a('s_mul_i32 s%d, s%d, 69632' % (S_LB, S_T))
    a('s_and_b32 s%d, s%d, 3' % (S_T2, sw))
    a('s_lshl_b32 s%d, s%d, 10' % (S_T2, S_T2))
    a('s_add_u32 s%d, s%d, s%d' % (S_T2, S_T2, S_LB))
    a.srd(SF_ZT, 34, 35, ZT_BYTES, ZT_OFF)
    a.srd(SF_YT, 34, 35, YT_BYTES, YT_OFF)
    a.srd(SF_WT, 34, 35, WT_BYTES, WT_OFF)
    a('v_lshlrev_b32 v3, 6, v4')
    a('v_lshl_add_u32 v3, v5, 3, v3')
    def issue_z(c):
        a('s_add_u32 s%d, s%d, %d' % (S_SA, S_F0, 64 * c))
        a('s_lshl_b32 s%d, s%d, 13' % (S_SA, S_SA))
        a('s_add_u32 s%d, s%d, %d' % (S_T, S_T2, 8192 * c))
        a('s_mov_b32 m0, s%d' % S_T)
        a('s_add_u32 s%d, s%d, 4096' % (S_SB, S_SA))
        a('buffer_load_dwordx4 v2, s[%d:%d], s%d offen lds' % (SF_ZT, SF_ZT + 3, S_SA))
        a('s_add_u32 s%d, s%d, 4096' % (S_T, S_T))
        a('s_mov_b32 m0, s%d' % S_T)
        a.nop(1)
        a('buffer_load_dwordx4 v2, s[%d:%d], s%d offen lds' % (SF_ZT, SF_ZT + 3, S_SB))
    def issue_w(c):
        WP = WPB[c & 1]
        a('s_add_u32 s%d, s%d, %d' % (S_SA, S_F0, 64 * c))
        a('s_lshl_b32 s%d, s%d, 13' % (S_SA, S_SA))
        a('s_add_u32 s%d, s%d, 4096' % (S_SB, S_SA))
        for pl in range(2):
            for mt in range(2):
                a('buffer_load_dwordx2 %s, v3, s[%d:%d], s%d offen offset:%d' % (vr(WP + 4 * pl + 2 * mt, 2), SF_WT, SF_WT + 3, S_SA + pl, 32 * mt))
    issue_z(0)
    issue_z(1)
    stamp(a, 1)
    WR, WI = 80, 88
    a('s_mov_b32 s%d, 0x%x' % (S_I64, f32bits(1.0 / 64)))
    a('s_mov_b32 s%d, 0x%x' % (S_I32, f32bits(1.0 / 32)))
    a('s_mov_b32 s%d, 0x%x' % (S_I2K, f32bits(1.0 / 2048)))
    C1, S1, NS1 = 16, 24, 32
    C2, S2, NS2 = 40, 48, 56
    TWC, TWS = 64, 72
    T0 = 152
    def rotblk(Cd, Sd, Cs, Ss, P):
        a('v_pk_mul_f32 %s, %s, %s op_sel:[0,0] op_sel_hi:[1,0]' % (vr(Cd, 2), vr(Cs, 2), vr(P, 2)))
        a('v_pk_mul_f32 %s, %s, %s op_sel:[0,0] op_sel_hi:[1,0]' % (vr(Sd, 2), vr(Ss, 2), vr(P, 2)))
        a('v_pk_fma_f32 %s, %s, %s, %s op_sel:[0,1,0] op_sel_hi:[1,1,1] neg_lo:[1,0,0] neg_hi:[1,0,0]' % (vr(Cd, 2), vr(Ss, 2), vr(P, 2), vr(Cd, 2)))
        a('v_pk_fma_f32 %s, %s, %s, %s op_sel:[0,1,0] op_sel_hi:[1,1,1]' % (vr(Sd, 2), vr(Cs, 2), vr(P, 2), vr(Sd, 2)))
    X1C, X1S = 96, 104
    X2C, X2S = 112, 116
    P12, P14, P22, PT2, PT16 = 120, 122, 124, 126, 128
    t = T0
    a('v_lshlrev_b32 v7, 3, v5')
    a('v_mul_u32_u24 v%d, v7, v4' % t)
    a('v_add_u32 v%d, v%d, v4' % (t + 1, t))
    a('v_lshlrev_b32 v%d, 1, v4' % (t + 2))
    a('v_lshlrev_b32 v%d, 2, v4' % (t + 3))
    for e in range(4):
        a('v_and_b32 v%d, 63, v%d' % (t + e, t + e))
    cs(a, X1C, X1S, t, S_I64, t + 4)
    cs(a, X1C + 1, X1S + 1, t + 1, S_I64, t + 5)
    cs(a, P12, P12 + 1, t + 2, S_I64, t + 6)
    cs(a, P14, P14 + 1, t + 3, S_I64, t + 7)
    a('v_lshlrev_b32 v7, 2, v5')
    a('v_mul_u32_u24 v%d, v7, v6' % t)
    a('v_add_u32 v%d, v%d, v6' % (t + 1, t))
    a('v_lshlrev_b32 v%d, 1, v6' % (t + 2))
    for e in range(3):
        a('v_and_b32 v%d, 31, v%d' % (t + e, t + e))
    cs(a, X2C, X2S, t, S_I32, t + 4)
    cs(a, X2C + 1, X2S + 1, t + 1, S_I32, t + 5)
    cs(a, P22, P22 + 1, t + 2, S_I32, t + 6)
    a('v_mul_u32_u24 v%d, v7, v4' % t)
    a('v_add_u32 v%d, v%d, v4' % (t + 1, t))
    a('v_lshlrev_b32 v%d, 1, v4' % (t + 2))
    a('v_lshlrev_b32 v%d, 4, v4' % (t + 3))
    cs(a, TWC, TWS, t, S_I2K, t + 4)
    cs(a, TWC + 1, TWS + 1, t + 1, S_I2K, t + 5)
    cs(a, PT2, PT2 + 1, t + 2, S_I2K, t + 6)
    cs(a, PT16, PT16 + 1, t + 3, S_I2K, t + 7)
    a('v_and_b32 v8, 1, v0')
    a('v_mul_u32_u24 v8, 0x8000, v8')
    a('v_lshl_or_b32 v8, v8, 16, v8')
    rotblk(X1C + 2, X1S + 2, X1C, X1S, P12)
    rotblk(X2C + 2, X2S + 2, X2C, X2S, P22)
    rotblk(TWC + 2, TWS + 2, TWC, TWS, PT2)
    rotblk(X1C + 4, X1S + 4, X1C, X1S, P14)
    rotblk(X1C + 6, X1S + 6, X1C + 2, X1S + 2, P14)
    rotblk(TWC + 4, TWS + 4, TWC, TWS, PT16)
    rotblk(TWC + 6, TWS + 6, TWC + 2, TWS + 2, PT16)
    for q in range(4):
        a('v_cvt_pk_bf16_f32 v%d, v%d, v%d' % (C1 + q, X1C + 2 * q, X1C + 2 * q + 1))
        a('v_cvt_pk_bf16_f32 v%d, v%d, v%d' % (S1 + q, X1S + 2 * q, X1S + 2 * q + 1))
        a('v_cvt_pk_bf16_f32 v%d, -v%d, -v%d' % (NS1 + q, X1S + 2 * q, X1S + 2 * q + 1))
    for T in (C1, S1, NS1):
        for q in range(4):
            a('v_xor_b32 v%d, v8, v%d' % (T + 4 + q, T + q))
    for q in range(2):
        a('v_cvt_pk_bf16_f32 v%d, v%d, v%d' % (C2 + q, X2C + 2 * q, X2C + 2 * q + 1))
        a('v_cvt_pk_bf16_f32 v%d, v%d, v%d' % (S2 + q, X2S + 2 * q, X2S + 2 * q + 1))
        a('v_cvt_pk_bf16_f32 v%d, -v%d, -v%d' % (NS2 + q, X2S + 2 * q, X2S + 2 * q + 1))
    for T in (C2, S2, NS2):
        for q in range(2):
            a('v_xor_b32 v%d, v8, v%d' % (T + 2 + q, T + q))
        for q in range(4):
            a('v_xor_b32 v%d, 0x80000000, v%d' % (T + 4 + q, T + q))
    a('v_lshrrev_b32 v8, 2, v6')
    a('v_and_b32 v9, 3, v6')
    a('v_lshl_add_u32 v8, v5, 3, v8')
    a('v_mul_u32_u24 v11, 72, v8')
    a('v_lshl_add_u32 v11, v9, 4, v11')
    a('v_add_u32 v11, s%d, v11' % S_LB)
    a('v_add_u32 v11, 32768, v11')
    a('v_lshlrev_b32 v8, 6, v8')
    a('v_add_u32 v8, s%d, v8' % S_LB)
    a('v_lshl_add_u32 v10, v9, 3, v8')
    a('v_and_b32 v9, 1, v5')
    a('v_lshl_add_u32 v10, v9, 5, v10')
    a('v_xor_b32 v14, 32, v10')
    a('v_lshlrev_b32 v12, 6, v4')
    a('v_lshl_add_u32 v13, v5, 4, v12')
    a('v_mul_u32_u24 v12, 72, v4')
    a('v_lshl_add_u32 v12, v5, 3, v12')
    a('v_add_u32 v12, s%d, v12' % S_LB)
    a('v_add_u32 v12, 32768, v12')
    def mf(d, x, y, z=False):
        a('v_mfma_f32_16x16x32_bf16 %s, %s, %s, %s' % (vr(d, 4), vr(x, 4), vr(y, 4), '0' if z else vr(d, 4)))
    NEG = ' neg_lo:[1,0,0] neg_hi:[1,0,0]'
    class Col:
        def __init__(self, c):
            self.c = c
            b = 80 + 72 * (c & 1)
            self.ZR, self.ZI, self.ACC, self.T0, self.BR, self.BI = b, b + 16, b + 32, b + 48, b + 64, b + 68
            self.WP = WPB[c & 1]
        def TR(self, mt): return self.ACC + 4 * mt
        def TI(self, mt): return self.ACC + 8 + 4 * mt
        def reads(self, base, mtstep):
            for pl, Z in ((0, self.ZR), (1, self.ZI)):
                for mt in range(2):
                    for ks in range(2):
                        for h in range(2):
                            d = Z + 8 * mt + 4 * ks + 2 * h
                            if base == 10:
                                a('ds_read_b64_tr_b16 %s, v%d offset:%d' % (vr(d, 2), 14 if mt else 10, 8192 * self.c + pl * 4096 + ks * 2048 + h * 256))
                            else:
                                a('ds_read_b64_tr_b16 %s, v%d offset:%d' % (vr(d, 2), base, 9216 * self.c + pl * 4608 + ks * 2304 + h * 288 + mt * 8))
        def big(self, inv):
            Sa, Sb = (NS1, S1) if inv else (S1, NS1)
            for mt in range(2):
                for ks in range(2):
                    zr, zi = self.ZR + 8 * mt + 4 * ks, self.ZI + 8 * mt + 4 * ks
                    mf(self.TR(mt), zr, C1 + 4 * ks, ks == 0)
                    mf(self.TI(mt), zi, C1 + 4 * ks, ks == 0)
                    mf(self.TR(mt), zi, Sa + 4 * ks)
                    mf(self.TI(mt), zr, Sb + 4 * ks)
        def small(self, inv):
            Sa, Sb = (NS2, S2) if inv else (S2, NS2)
            a.nop(2)
            for mt in range(2):
                mf(self.TR(mt), C2 + 4 * mt, self.BR, True)
                mf(self.TI(mt), C2 + 4 * mt, self.BI, True)
                mf(self.TR(mt), Sa + 4 * mt, self.BI)
                mf(self.TI(mt), Sb + 4 * mt, self.BR)
        def pack(self):
            T = self.T0
            for q in range(4):
                a('v_cvt_pk_bf16_f32 v%d, v%d, v%d' % (self.BR + q, T + 2 * q, T + 2 * q + 1))
                a('v_cvt_pk_bf16_f32 v%d, v%d, v%d' % (self.BI + q, T + 8 + 2 * q, T + 8 + 2 * q + 1))
        def twiddle(self, conj):
            T = self.T0
            for i in range(8):
                tr_, ti_ = self.ACC + i, self.ACC + 8 + i
                a('v_mul_f32 v%d, v%d, v%d' % (T + i, tr_, TWC + i))
                a('v_mul_f32 v%d, v%d, v%d' % (T + 8 + i, ti_, TWC + i))
                if not conj:
                    a('v_fmac_f32 v%d, v%d, v%d' % (T + i, ti_, TWS + i))
                    a('v_fma_f32 v%d, -v%d, v%d, v%d' % (T + 8 + i, tr_, TWS + i, T + 8 + i))
                else:
                    a('v_fma_f32 v%d, -v%d, v%d, v%d' % (T + i, ti_, TWS + i, T + i))
                    a('v_fmac_f32 v%d, v%d, v%d' % (T + 8 + i, tr_, TWS + i))
            self.pack()
        def wmul(self):
            T = self.T0
            WR, WI = self.ZR, self.ZR + 8
            for i in range(16):
                src = self.WP + (i >> 1)
                if i & 1:
                    a('v_and_b32 v%d, 0xffff0000, v%d' % (WR + i, src))
                else:
                    a('v_lshlrev_b32 v%d, 16, v%d' % (WR + i, src))
            for i in range(8):
                xr, xi = self.ACC + i, self.ACC + 8 + i
                a('v_mul_f32 v%d, v%d, v%d' % (T + i, xr, WR + i))
                a('v_mul_f32 v%d, v%d, v%d' % (T + 8 + i, xr, WI + i))
                a('v_fma_f32 v%d, -v%d, v%d, v%d' % (T + i, xi, WI + i, T + i))
                a('v_fmac_f32 v%d, v%d, v%d' % (T + 8 + i, xi, WR + i))
            self.pack()
        def t2write(self):
            for mt in range(2):
                a('ds_write_b64 v12, %s offset:%d' % (vr(self.BR + 2 * mt, 2), 9216 * self.c + 32 * mt))
                a('ds_write_b64 v12, %s offset:%d' % (vr(self.BI + 2 * mt, 2), 9216 * self.c + 4608 + 32 * mt))
        def out(self):
            c = self.c
            a('s_add_u32 s%d, s%d, %d' % (S_T, S_F0, 64 * c))
            a('s_mul_i32 s%d, s%d, %d' % (S_SA, S_T, 2 * YP))
            a('s_add_u32 s%d, s%d, %d' % (S_SB, S_SA, YP))
            if c == 0:
                a('s_cmp_eq_u32 s%d, 0' % S_T)
                a('s_cselect_b32 s%d, 0x7ff00000, s%d' % (S_SB, S_SB))
            if c == 3:
                a('s_cmp_eq_u32 s%d, 224' % S_T)
                a('s_cselect_b32 s%d, %d, s%d' % (S_SA, YP, S_SA))
                a('s_cselect_b32 s%d, 0x7ff00000, s%d' % (S_SB, S_SB))
            for q in range(4):
                a('v_cvt_pk_bf16_f32 v%d, v%d, v%d' % (self.BR + q, self.ACC + 2 * q, self.ACC + 2 * q + 1))
                a('v_cvt_pk_bf16_f32 v%d, v%d, v%d' % (self.BI + q, self.ACC + 8 + 2 * q, self.ACC + 8 + 2 * q + 1))
            a('buffer_store_dwordx4 %s, v13, s[%d:%d], s%d offen' % (vr(self.BR, 4), SF_YT, SF_YT + 3, S_SA))
            a('buffer_store_dwordx4 %s, v13, s[%d:%d], s%d offen' % (vr(self.BI, 4), SF_YT, SF_YT + 3, S_SB))
    def cap(fn, *args):
        old = a.lines
        a.lines = []
        fn(*args)
        r = [l for l in a.lines if 's_nop' not in l]
        a.lines = old
        return r
    def mix(mfl, val, step=2):
        out = []
        vi = 0
        for _ in range(2):
            if vi < len(val):
                out.append(val[vi]); vi += 1
            else:
                out.append('    s_nop 0')
        for m in mfl:
            out.append(m)
            for _ in range(step):
                if vi < len(val):
                    out.append(val[vi]); vi += 1
        out += val[vi:]
        a.lines += out
    for p in range(2):
        A, B = Col(2 * p), Col(2 * p + 1)
        a('s_waitcnt vmcnt(%d)' % (0 if p == 0 else 8))
        a('s_barrier')
        stamp(a, 2 + 2 * p)
        A.reads(10, 32)
        B.reads(10, 32)
        if p == 0:
            issue_w(0)
            issue_w(1)
            issue_z(2)
            issue_z(3)
        a('s_waitcnt lgkmcnt(0)')
        A.big(False)
        a.nop(4)
        mix(cap(B.big, False), cap(A.twiddle, False))
        mix(cap(A.small, False), cap(B.twiddle, False))
        a('s_waitcnt vmcnt(%d)' % (4 if p == 0 else 0))
        mix(cap(B.small, False), cap(A.wmul))
        mix(cap(A.small, True), cap(B.wmul))
        if p == 0:
            issue_w(2)
            issue_w(3)
        mix(cap(B.small, True), cap(A.twiddle, True))
        A.t2write()
        B.twiddle(True)
        B.t2write()
        stamp(a, 3 + 2 * p)
    a('s_waitcnt lgkmcnt(0)')
    a('s_barrier')
    stamp(a, 6)
    cols = [Col(c) for c in range(4)]
    cols[0].reads(11, 8)
    cols[1].reads(11, 8)
    for p in range(2):
        A, B = cols[2 * p], cols[2 * p + 1]
        a('s_waitcnt lgkmcnt(0)')
        A.big(True)
        a.nop(4)
        mix(cap(B.big, True), ['    s_nop 3'] * 0 + cap(A.out), 1)
        if p == 0:
            cols[2].reads(11, 8)
        a.nop(8)
        B.out()
        if p == 0:
            cols[3].reads(11, 8)
        a.nop(1)
        stamp(a, 7 + p)
    a('s_waitcnt vmcnt(0)') if STAMPS else None
```

```python
from asmlib import *

import os
PREFETCH = int(os.environ.get('PREFETCH', '1'))
XN_OFF = 0
ZT_OFF = 2 << 20
YT_OFF = 4 << 20
G_OFF = 6 << 20
H_OFF = 8 << 20
XN_BYTES = 2048 * 448 * 2
ZT_BYTES = 256 * 2 * 2048 * 2
HP = int(os.environ.get('HP', '3712'))
YP = int(os.environ.get('YP', '4224'))
YT_BYTES = 450 * YP
G_ROWS = 480
G_BYTES = G_ROWS * 896
H_BYTES = 2048 * HP
WT_OFF = 16 << 20
WT_BYTES = 225 * 2 * 4096

def load_ptrs(a):
    a('s_load_dwordx16 s[16:31], s[0:1], 0')
    a('s_load_dwordx4 s[32:35], s[0:1], 64')

def mod448(a, p, t1, out):
    a('v_lshrrev_b32 v%d, 6, v%d' % (t1, p))
    a('v_mul_u32_u24 v%d, 9363, v%d' % (t1, t1))
    a('v_lshrrev_b32 v%d, 16, v%d' % (t1, t1))
    a('v_mul_u32_u24 v%d, 448, v%d' % (t1, t1))
    a('v_sub_u32 v%d, v%d, v%d' % (out, p, t1))

def gen_k0():
    a = Asm()
    PITCH = 928
    a('s_cmp_ge_u32 s2, 256')
    a('s_cbranch_scc1 L_k0_end')
    stamp(a, 0)
    load_ptrs(a)
    a('s_lshr_b32 s3, s2, 2')
    a('s_and_b32 s4, s2, 3')
    a('v_lshrrev_b32 v1, 3, v0')
    a('v_and_b32 v2, 7, v0')
    a('v_mul_u32_u24 v3, 896, v1')
    a('v_lshl_add_u32 v3, v2, 4, v3')
    a('s_mul_i32 s5, s3, 28672')
    a('s_waitcnt lgkmcnt(0)')
    a.srd(36, 16, 17, XN_BYTES)
    a.srd(40, 34, 35, XN_BYTES, XN_OFF)
    a.srd(44, 34, 35, ZT_BYTES, ZT_OFF)
    a.srd(48, 34, 35, G_BYTES, G_OFF)
    for i in range(7):
        a('buffer_load_dwordx4 %s, v3, s[36:39], s5 offen offset:%d' % (vr(8 + 4 * i, 4), 128 * i))
    a.srd(52, 18, 19, 2048 * 225 * 2)
    a.srd(56, 20, 21, 2048 * 225 * 2)
    a.srd(60, 34, 35, WT_BYTES, WT_OFF)
    a('s_lshl_b32 s8, s4, 3')
    a('s_lshl_b32 s8, s8, 6')
    a('s_add_u32 s8, s8, s3')
    a('s_mul_i32 s8, s8, 450')
    a('v_lshlrev_b32 v36, 1, v0')
    for e in range(8):
        for pl in range(2):
            a('s_add_u32 s9, s8, %d' % (e * 64 * 450))
            a('buffer_load_ushort v%d, v36, s[%d:%d], s9 offen' % (212 + 8 * pl + e, 52 + 4 * pl, 55 + 4 * pl))
    if PREFETCH:
        a('s_lshl_b32 s9, s2, 12')
        a('v_lshl_add_u32 v37, v0, 4, s9')
        a('s_mov_b32 s9, 0x100000')
        PS = [64, 68, 12]
        for m in range(3):
            a.srd(PS[m], 24 + 2 * m, 25 + 2 * m, 448 * 3584)
        for m in (2, 0, 1):
            a('buffer_load_dwordx4 %s, v37, s[%d:%d], 0 offen' % (vr(236 + 4 * m, 4), PS[m], PS[m] + 3))
            a('buffer_load_dwordx4 %s, v37, s[%d:%d], s9 offen' % (vr(248 + 4 * (m & 1), 4), PS[m], PS[m] + 3))
    a('v_and_b32 v4, 15, v0')
    a('v_lshrrev_b32 v5, 6, v0')
    a('v_lshl_add_u32 v4, v5, 4, v4')
    a('s_lshl_b32 s6, s4, 6')
    a('v_add_u32 v4, s6, v4')
    a('v_bfe_u32 v5, v0, 4, 2')
    a('v_lshlrev_b32 v5, 3, v5')
    inv448 = f32bits(1.0 / 448.0)
    a('s_mov_b32 s7, 0x%x' % inv448)
    a('v_cvt_f32_u32 v6, v4')
    a('v_mul_f32 v6, s7, v6')
    a('v_sin_f32 v7, v6')
    a('v_cos_f32 v6, v6')
    BF = 100
    C0, S0 = 44, 52
    for t in range(14):
        a('v_add_u32 v40, %d, v5' % (32 * t))
        a('v_mul_u32_u24 v41, v40, v4')
        mod448(a, 41, 42, 43)
        a('v_cvt_f32_u32 v43, v43')
        a('v_mul_f32 v43, s7, v43')
        a('v_cos_f32 v%d, v43' % C0)
        a('v_sin_f32 v%d, v43' % S0)
        a.nop(1)
        for j in range(7):
            a('v_mul_f32 v40, v%d, v7' % (S0 + j))
            a('v_mul_f32 v41, v%d, v7' % (C0 + j))
            a('v_fma_f32 v%d, v%d, v6, -v40' % (C0 + j + 1, C0 + j))
            a('v_fma_f32 v%d, v%d, v6, v41' % (S0 + j + 1, S0 + j))
        for q in range(4):
            a('v_cvt_pk_bf16_f32 v%d, v%d, v%d' % (BF + 8 * t + q, C0 + 2 * q, C0 + 2 * q + 1))
            a('v_cvt_pk_bf16_f32 v%d, -v%d, -v%d' % (BF + 8 * t + 4 + q, S0 + 2 * q, S0 + 2 * q + 1))
    stamp(a, 1)
    a('s_cmp_ge_u32 s2, 224')
    a('s_cbranch_scc1 L_k0_nog')
    a('s_mov_b32 s8, 0x%x' % f32bits(2.0 / 448.0 / 2048.0))
    a('s_cmp_eq_u32 s2, 0')
    a('s_cselect_b32 s8, 0x%x, s8' % f32bits(1.0 / 448.0 / 2048.0))
    a('s_cmp_eq_u32 s2, 224')
    a('s_cselect_b32 s8, 0x%x, s8' % f32bits(1.0 / 448.0 / 2048.0))
    a('s_cmp_gt_u32 s2, 224')
    a('s_cselect_b32 s8, 0, s8')
    a('v_cmp_gt_u32 vcc, 224, v0')
    a('s_and_saveexec_b64 s[10:11], vcc')
    a('s_cbranch_execz L_k0_g_restore')
    a('v_cmp_le_u32 vcc, 112, v0')
    a.nop(2)
    a('v_cndmask_b32 v40, 0, 1, vcc')
    a('v_mul_u32_u24 v41, 112, v40')
    a('v_sub_u32 v41, v0, v41')
    a('v_cvt_f32_u32 v42, v40')
    a('v_mul_f32 v42, 0.25, v42')
    a('v_mov_b32 v47, s2')
    a('s_cmp_lg_u32 s2, 0')
    a('s_cbranch_scc1 L_k0_g_f')
    a('v_mul_u32_u24 v47, 224, v40')
    a('v_mov_b32 v42, 0')
    a.label('L_k0_g_f')
    a('v_lshlrev_b32 v43, 2, v41')
    for e in range(4):
        a('v_add_u32 v44, %d, v43' % e)
        a('v_mul_u32_u24 v44, v47, v44')
        mod448(a, 44, 45, 46)
        a('v_cvt_f32_u32 v46, v46')
        a('v_fma_f32 v46, v46, s7, v42')
        a('v_cos_f32 v%d, v46' % (48 + e))
        a.nop(1)
        a('v_mul_f32 v%d, s8, v%d' % (48 + e, 48 + e))
    a('v_cvt_pk_bf16_f32 v52, v48, v49')
    a('v_cvt_pk_bf16_f32 v53, v50, v51')
    a('s_lshl_b32 s9, s2, 1')
    a('v_add_u32 v44, s9, v40')
    a('v_mul_u32_u24 v44, 896, v44')
    a('v_lshl_add_u32 v44, v41, 3, v44')
    a('buffer_store_dwordx2 v[52:53], v44, s[48:51], 0 offen')
    a.label('L_k0_g_restore')
    a('s_mov_b64 exec, s[10:11]')
    a.label('L_k0_nog')
    stamp(a, 2)
    F0 = 40
    a('s_waitcnt vmcnt(%d)' % (6 if PREFETCH else 0))
    stamp(a, 3)
    a('v_cmp_gt_u32 vcc, 225, v0')
    a('s_and_saveexec_b64 s[10:11], vcc')
    a('s_cbranch_execz L_k0_wt_restore')
    a('v_lshlrev_b32 v36, 13, v0')
    for pl in range(2):
        for q in range(4):
            a('v_lshl_or_b32 v%d, v%d, 16, v%d' % (228 + 4 * pl + q, 212 + 8 * pl + 2 * q + 1, 212 + 8 * pl + 2 * q))
    a('s_lshl_b32 s8, s3, 6')
    a('s_lshl_b32 s9, s4, 4')
    a('s_add_u32 s8, s8, s9')
    a('s_add_u32 s9, s8, 4096')
    a('buffer_store_dwordx4 v[228:231], v36, s[60:63], s8 offen')
    a('buffer_store_dwordx4 v[232:235], v36, s[60:63], s9 offen')
    a.label('L_k0_wt_restore')
    a('s_mov_b64 exec, s[10:11]')
    for i in range(28):
        a('v_lshlrev_b32 v%d, 16, v%d' % (F0 + 2 * i, 8 + i))
        a('v_and_b32 v%d, 0xffff0000, v%d' % (F0 + 2 * i + 1, 8 + i))
    for k in range(4):
        a('v_add_f32 v%d, v%d, v%d' % (96 + k, F0 + k, F0 + 4 + k))
    for i in range(8, 56):
        a('v_add_f32 v%d, v%d, v%d' % (96 + (i & 3), 96 + (i & 3), F0 + i))
    a('v_add_f32 v96, v96, v97')
    a('v_add_f32 v98, v98, v99')
    a('v_add_f32 v96, v96, v98')
    def red8(r):
        a.nop(2)
        a('v_add_f32_dpp v%d, v%d, v%d quad_perm:[1,0,3,2] row_mask:0xf bank_mask:0xf' % (r, r, r))
        a.nop(2)
        a('v_add_f32_dpp v%d, v%d, v%d quad_perm:[2,3,0,1] row_mask:0xf bank_mask:0xf' % (r, r, r))
        a.nop(2)
        a('v_add_f32_dpp v%d, v%d, v%d row_half_mirror row_mask:0xf bank_mask:0xf' % (r, r, r))
    red8(96)
    a('v_mul_f32 v97, s7, v96')
    a('v_mov_b32 v96, 0')
    a('v_mov_b32 v98, 0')
    for i in range(56):
        acc = 96 if (i & 1) == 0 else 98
        a('v_sub_f32 v99, v%d, v97' % (F0 + i))
        a('v_fmac_f32 v%d, v99, v99' % acc)
    a('v_add_f32 v96, v96, v98')
    red8(96)
    a('v_mul_f32 v96, s7, v96')
    a('v_cvt_pk_bf16_f32 v98, v97, v96')
    a('v_lshlrev_b32 v97, 16, v98')
    a('v_and_b32 v96, 0xffff0000, v98')
    a('v_add_f32 v96, 0x%x, v96' % f32bits(1e-5))
    a('v_cvt_pk_bf16_f32 v96, v96, v96')
    a('v_lshlrev_b32 v96, 16, v96')
    a('v_sqrt_f32 v96, v96')
    a.nop(1)
    a('v_cvt_pk_bf16_f32 v96, v96, v96')
    a('v_lshlrev_b32 v96, 16, v96')
    a('v_rcp_f32 v96, v96')
    a.nop(1)
    for i in range(28):
        x0, x1 = F0 + 2 * i, F0 + 2 * i + 1
        a('v_sub_f32 v%d, v%d, v97' % (x0, x0))
        a('v_sub_f32 v%d, v%d, v97' % (x1, x1))
        a('v_cvt_pk_bf16_f32 v99, v%d, v%d' % (x0, x1))
        a('v_lshlrev_b32 v%d, 16, v99' % x0)
        a('v_and_b32 v%d, 0xffff0000, v99' % x1)
        a('v_mul_f32 v%d, v%d, v96' % (x0, x0))
        a('v_mul_f32 v%d, v%d, v96' % (x1, x1))
        a('v_cvt_pk_bf16_f32 v%d, v%d, v%d' % (8 + i, x0, x1))
    a('v_mul_u32_u24 v98, %d, v1' % PITCH)
    a('v_lshl_add_u32 v98, v2, 4, v98')
    for i in range(7):
        a('ds_write_b128 v98, %s offset:%d' % (vr(8 + 4 * i, 4), 128 * i))
    a('s_cmp_lg_u32 s4, 0')
    a('s_cbranch_scc1 L_k0_noxn')
    for i in range(7):
        a('buffer_store_dwordx4 %s, v3, s[40:43], s5 offen offset:%d' % (vr(8 + 4 * i, 4), 128 * i))
    a.label('L_k0_noxn')
    stamp(a, 4)
    ACC = 60
    for i in range(16):
        a('v_mov_b32 v%d, 0' % (ACC + i))
    a('v_and_b32 v84, 15, v0')
    a('v_lshrrev_b32 v85, 2, v84')
    a('v_and_b32 v84, 3, v84')
    a('v_lshl_add_u32 v84, v85, 3, v84')
    a('v_mul_u32_u24 v84, %d, v84' % PITCH)
    a('v_lshl_add_u32 v84, v5, 1, v84')
    a('s_waitcnt lgkmcnt(0)')
    a('s_barrier')
    stamp(a, 5)
    AF = [76, 88]
    AF = [76, 40]
    def rd(t, buf):
        a('ds_read_b128 %s, v84 offset:%d' % (vr(buf, 4), 64 * t))
        a('ds_read_b128 %s, v84 offset:%d' % (vr(buf + 4, 4), 64 * t + 4 * PITCH))
    rd(0, AF[0])
    for t in range(14):
        cur = AF[t & 1]
        if t + 1 < 14:
            rd(t + 1, AF[(t + 1) & 1])
            a('s_waitcnt lgkmcnt(2)')
        else:
            a('s_waitcnt lgkmcnt(0)')
        for mt in range(2):
            for c in range(2):
                d = ACC + 8 * mt + 4 * c
                a('v_mfma_f32_16x16x32_bf16 %s, %s, %s, %s' % (vr(d, 4), vr(cur + 4 * mt, 4), vr(BF + 8 * t + 4 * c, 4), vr(d, 4)))
    a.nop(10)
    stamp(a, 6)
    a('v_lshlrev_b32 v85, 13, v4')
    a('v_lshl_add_u32 v85, v5, 1, v85')
    a('v_add_u32 v86, 4096, v85')
    a('s_lshl_b32 s6, s3, 6')
    for c in range(2):
        o = 88 + 4 * c
        for mt in range(2):
            d = ACC + 8 * mt + 4 * c
            a('v_cvt_pk_bf16_f32 v%d, v%d, v%d' % (o + 2 * mt, d, d + 1))
            a('v_cvt_pk_bf16_f32 v%d, v%d, v%d' % (o + 2 * mt + 1, d + 2, d + 3))
        a('buffer_store_dwordx4 %s, v%d, s[44:47], s6 offen' % (vr(o, 4), 85 + c))
    a('s_waitcnt vmcnt(0)') if STAMPS else None
    stamp(a, 7)
    dump_stamps(a, 8, 100, 'k0')
    a.label('L_k0_end')
    a('s_endpgm')
    return a.text(), 256, 32 * PITCH
```

```python
from asmlib import *
from k0 import *
import fft3 as fft2
EXP = int(os.environ.get('EXP', '0'))

def gelu_epilogue(a, ACC, T, OUT, store):
    KC, KK = T + 8, T + 10
    for v in range(2):
        for p in range(8):
            g0 = ACC + 16 * v + 2 * p
            u0 = g0 + 32
            t = T + 2 + 2 * (p & 1) * 0
            a('v_cvt_pk_bf16_f32 v%d, v%d, v%d' % (T, g0, g0 + 1))
            a('v_cvt_pk_bf16_f32 v%d, v%d, v%d' % (T + 1, u0, u0 + 1))
            a('v_lshlrev_b32 v%d, 16, v%d' % (g0, T))
            a('v_and_b32 v%d, 0xffff0000, v%d' % (g0 + 1, T))
            a('v_lshlrev_b32 v%d, 16, v%d' % (u0, T + 1))
            a('v_and_b32 v%d, 0xffff0000, v%d' % (u0 + 1, T + 1))
            a('v_pk_mul_f32 %s, %s, %s' % (vr(t, 2), vr(g0, 2), vr(g0, 2)))
            a('v_pk_fma_f32 %s, %s, %s, %s' % (vr(t, 2), vr(t, 2), vr(KC, 2), vr(KK, 2)))
            a('v_pk_mul_f32 %s, %s, %s' % (vr(t, 2), vr(t, 2), vr(g0, 2)))
            a('v_exp_f32 v%d, v%d' % (t, t))
            a('v_exp_f32 v%d, v%d' % (t + 1, t + 1))
            a.nop(1)
            a('v_pk_add_f32 %s, %s, 1.0 op_sel_hi:[1,0]' % (vr(t, 2), vr(t, 2)))
            a('v_rcp_f32 v%d, v%d' % (t, t))
            a('v_rcp_f32 v%d, v%d' % (t + 1, t + 1))
            a.nop(1)
            a('v_pk_mul_f32 %s, %s, %s' % (vr(t, 2), vr(t, 2), vr(g0, 2)))
            a('v_cvt_pk_bf16_f32 v%d, v%d, v%d' % (T, t, t + 1))
            a('v_lshlrev_b32 v%d, 16, v%d' % (t, T))
            a('v_and_b32 v%d, 0xffff0000, v%d' % (t + 1, T))
            a('v_pk_mul_f32 %s, %s, %s' % (vr(t, 2), vr(t, 2), vr(u0, 2)))
            a('v_cvt_pk_bf16_f32 v%d, v%d, v%d' % (OUT + 8 * v + p, t, t + 1))
        for hh in range(2):
            store(v, hh, OUT + 8 * v + 4 * hh)

def gen_k1():
    a = Asm()
    NS = 3
    STG = 49152
    BOFF = 32768
    UPO = 8192
    SWG = int(os.environ.get('STAMPWG', '100'))
    VD, VA0, VA1 = 6, 20, 21
    a('s_cmp_ge_u32 s2, 256')
    a('s_cbranch_scc1 L_k1_end')
    stamp(a, 0)
    load_ptrs(a)
    a('v_lshrrev_b32 v1, 6, v0')
    a('v_and_b32 v2, 63, v0')
    a('v_readfirstlane_b32 s3, v1')
    a('s_cmp_ge_u32 s2, 32')
    a('s_cbranch_scc1 L_k1_gemm')
    a('s_mov_b32 s4, s2')
    a('s_waitcnt lgkmcnt(0)')
    fft2.fft_wg(a, 3, 4)
    stamp(a, 9)
    if os.environ.get('WAVEST'): dump_wave_stamps(a, [int(x) for x in os.environ['WAVEST'].split(',')], SWG, 'k1f')
    else: dump_stamps(a, 12, SWG, 'k1f')
    a('s_endpgm')
    a.label('L_k1_gemm')
    a('s_and_b32 s4, s2, 7')
    a('s_lshr_b32 s5, s2, 3')
    a('s_sub_u32 s5, s5, 4')
    a('s_lshr_b32 s6, s4, 2')
    a('s_and_b32 s7, s4, 3')
    a('s_lshl_b32 s6, s6, 2')
    a('s_and_b32 s8, s5, 3')
    a('s_add_u32 s4, s6, s8')
    a('s_mul_i32 s7, s7, 7')
    a('s_lshr_b32 s5, s5, 2')
    a('s_add_u32 s5, s7, s5')
    a('v_and_b32 v3, 31, v2')
    a('v_lshl_add_u32 v3, v1, 5, v3')
    a('v_lshrrev_b32 v4, 5, v2')
    a('s_mul_i32 s6, s4, 229376')
    a('v_lshrrev_b32 v5, 3, v2')
    a('v_lshl_add_u32 v5, v1, 5, v5')
    a('v_mul_u32_u24 v5, 896, v5')
    a('v_and_b32 v7, 7, v2')
    a('v_lshrrev_b32 v8, 4, v2')
    a('v_xor_b32 v8, v7, v8')
    a('v_lshl_add_u32 v%d, v8, 4, v5' % VA0)
    a('v_xor_b32 v8, 4, v8')
    a('v_lshl_add_u32 v%d, v8, 4, v5' % VA1)
    a('v_add_u32 v%d, 7168, v%d' % (VA1, VA1))
    a('v_lshrrev_b32 v6, 3, v2')
    a('v_lshl_add_u32 v6, v1, 3, v6')
    a('v_mul_u32_u24 v6, 3584, v6')
    a('v_bfe_u32 v8, v2, 4, 1')
    a('v_lshlrev_b32 v8, 2, v8')
    a('v_xor_b32 v7, v7, v8')
    a('v_lshl_add_u32 v%d, v7, 4, v6' % VD)
    a('s_lshl_b32 s7, s5, 7')
    a('s_lshl_b32 s8, s3, 10')
    a('s_lshl_b32 s11, s3, 12')
    a('s_waitcnt lgkmcnt(0)')
    a.srd(36, 34, 35, XN_BYTES, XN_OFF)
    a.srd(40, 24, 25, 448 * 3584)
    a.srd(44, 26, 27, 448 * 3584)
    a.srd(48, 34, 35, H_BYTES, H_OFF)
    def issue_groups(c):
        sb = (c % NS) * STG
        g = []
        g.append(['s_add_u32 s9, s7, %d' % (c * 229376),
                  's_add_u32 s10, s8, %d' % (sb + BOFF),
                  's_mov_b32 m0, s10',
                  's_add_u32 s10, s10, %d' % UPO,
                  'buffer_load_dwordx4 v%d, s[40:43], s9 offen lds' % VD])
        g.append(['s_mov_b32 m0, s10',
                  's_add_u32 s14, s6, %d' % (c * 128),
                  'buffer_load_dwordx4 v%d, s[44:47], s9 offen lds' % VD])
        for q in range(4):
            g.append(['s_add_u32 s10, s11, %d' % (sb + q * 1024),
                      's_mov_b32 m0, s10',
                      's_add_u32 s14, s14, 14336' if q == 2 else 's_nop 0',
                      'buffer_load_dwordx4 v%d, s[36:39], s14 offen lds' % (VA0 + (q & 1))])
        return g
    for g in issue_groups(0):
        for ln in g: a(ln)
    stamp(a, 1)
    a('v_lshrrev_b32 v8, 4, v2')
    a('v_and_b32 v9, 15, v2')
    a('v_lshrrev_b32 v10, 2, v9')
    a('v_and_b32 v11, 3, v9')
    a('v_lshrrev_b32 v12, 1, v8')
    a('v_lshl_add_u32 v12, v12, 3, v10')
    a('v_lshlrev_b32 v12, 7, v12')
    a('v_and_b32 v13, 1, v11')
    a('v_lshlrev_b32 v13, 1, v13')
    a('v_and_b32 v14, 1, v8')
    a('v_add_u32 v13, v13, v14')
    a('v_lshrrev_b32 v14, 1, v10')
    a('v_lshl_add_u32 v13, v14, 2, v13')
    a('v_lshl_add_u32 v12, v13, 4, v12')
    a('v_lshrrev_b32 v14, 1, v11')
    a('v_lshl_add_u32 v16, v14, 3, v12')
    a('v_xor_b32 v17, 64, v16')
    VB = 24
    for s in range(NS):
        a('v_add_u32 v%d, %d, v16' % (VB + 2 * s, s * STG + BOFF))
        a('v_add_u32 v%d, %d, v17' % (VB + 2 * s + 1, s * STG + BOFF))
    VX = 96
    a('v_bfe_u32 v9, v3, 1, 3')
    for kk in range(4):
        a('v_add_u32 v10, %d, v4' % (2 * kk))
        a('v_xor_b32 v10, v10, v9')
        a('v_lshlrev_b32 v10, 4, v10')
        a('v_lshl_add_u32 v10, v3, 7, v10')
        for s in range(NS):
            a('v_add_u32 v%d, %d, v10' % (VX + 4 * s + kk, s * STG))
    WF = [32, 52]
    ACC = 112
    for i in range(64):
        a('v_mov_b32 v%d, 0' % (ACC + i))
    def rd(s, kk, buf):
        if EXP == 2: return
        if EXP == 4:
            for u in range(5):
                a('ds_read_b128 %s, v%d' % (vr(buf + 4 * u, 4), VX + 4 * s + kk))
            return
        a('ds_read_b128 %s, v%d' % (vr(buf + 16, 4), VX + 4 * s + kk))
        for u in range(4):
            for h in range(2):
                a('ds_read_b64_tr_b16 %s, v%d offset:%d' % (vr(buf + 4 * u + 2 * h, 2), VB + 2 * s + (u & 1), (u >> 1) * UPO + kk * 2048 + h * 512))
    for g in issue_groups(1):
        for ln in g: a(ln)
    a('s_waitcnt vmcnt(6)')
    a('s_barrier')
    rd(0, 0, WF[0])
    for c in range(7):
        s = c % NS
        stamp(a, 2 + c)
        groups = issue_groups(c + 2) if (c + 2 < 7 and EXP != 1) else []
        for kk in range(4):
            cur = WF[kk & 1]
            if kk < 3:
                rd(s, kk + 1, WF[(kk + 1) & 1])
                a('s_waitcnt lgkmcnt(9)')
            else:
                a('s_waitcnt lgkmcnt(0)')
                if c + 1 < 7:
                    a('s_waitcnt vmcnt(%d)' % (6 if c + 2 < 7 else 0))
                    a('s_barrier')
                    rd((c + 1) % NS, 0, WF[0])
            for u in range(4):
                d = ACC + 16 * u
                if EXP != 3:
                    a('v_mfma_f32_32x32x16_bf16 %s, %s, %s, %s' % (vr(d, 16), vr(cur + 4 * u, 4), vr(cur + 16, 4), vr(d, 16)))
                if groups and kk < 3 and u in (0, 2):
                    for ln in groups.pop(0): a(ln)
    a.nop(14)
    stamp(a, 9)
    KKV = -2.0 * 0.7978845608028654 * 1.4426950408889634
    a('v_mov_b32 v40, 0x%x' % f32bits(0.044715 * KKV))
    a('v_mov_b32 v41, 0x%x' % f32bits(0.044715 * KKV))
    a('v_mov_b32 v42, 0x%x' % f32bits(KKV))
    a('v_mov_b32 v43, 0x%x' % f32bits(KKV))
    a('v_mul_u32_u24 v5, %d, v3' % HP)
    a('v_lshl_add_u32 v5, v4, 5, v5')
    a('s_mul_i32 s14, s4, %d' % (256 * HP))
    a('s_add_u32 s14, s14, s7')
    def store(v, hh, reg):
        a('buffer_store_dwordx4 %s, v5, s[48:51], s14 offen offset:%d' % (vr(reg, 4), 64 * v + 16 * hh))
    gelu_epilogue(a, ACC, 32, 64, store)
    stamp(a, 10)
    a('s_waitcnt vmcnt(0)') if STAMPS else None
    stamp(a, 11)
    if os.environ.get('WAVEST'): dump_wave_stamps(a, [0, 1, 2, 9], SWG, 'k1')
    else: dump_stamps(a, 12, SWG, 'k1')
    a.label('L_k1_end')
    a('s_endpgm')
    return a.text(), 256, NS * STG
```

```python
from asmlib import *
from k0 import *
import os

def gen_k3():
    a = Asm()
    NS = int(os.environ.get('K3NS', '6'))
    NH = 28
    NY = 7
    NC = NH + NY
    a('s_cmp_ge_u32 s2, 224')
    a('s_cbranch_scc1 L_k3_end')
    stamp(a, 0)
    load_ptrs(a)
    a('v_lshrrev_b32 v1, 6, v0')
    a('v_and_b32 v2, 63, v0')
    a('v_readfirstlane_b32 s3, v1')
    a('s_and_b32 s4, s2, 7')
    a('s_lshr_b32 s5, s2, 3')
    a('s_and_b32 s6, s5, 3')
    a('s_lshl_b32 s4, s4, 2')
    a('s_add_u32 s4, s4, s6')
    a('s_lshr_b32 s5, s5, 2')
    a('s_lshl_b32 s10, s5, 7')
    a('s_cmp_lt_u32 s3, 4')
    a('s_cbranch_scc1 L_k3_cons')
    a('s_sub_u32 s3, s3, 4')
    a('v_subrev_u32 v1, 4, v1')
    a('v_lshrrev_b32 v3, 3, v2')
    a('v_lshl_add_u32 v3, v1, 4, v3')
    a('v_and_b32 v4, 7, v2')
    a('v_bfe_u32 v5, v2, 4, 1')
    a('v_lshlrev_b32 v5, 2, v5')
    a('v_xor_b32 v5, v4, v5')
    a('v_mul_u32_u24 v6, 896, v3')
    a('v_lshl_add_u32 v6, v5, 4, v6')
    a('v_add_u32 v7, 7168, v6')
    a('v_mul_u32_u24 v8, %d, v3' % YP)
    a('v_lshl_add_u32 v8, v5, 4, v8')
    a('v_add_u32 v9, %d, v8' % (8 * YP))
    a('v_lshrrev_b32 v10, 4, v2')
    a('v_xor_b32 v11, v4, v10')
    a('v_mul_u32_u24 v12, %d, v3' % HP)
    a('v_lshl_add_u32 v10, v11, 4, v12')
    a('v_xor_b32 v11, 4, v11')
    a('v_lshl_add_u32 v11, v11, 4, v12')
    a('v_add_u32 v11, %d, v11' % (8 * HP))
    a('s_mul_i32 s11, s4, %d' % (64 * HP))
    a('s_lshl_b32 s12, s4, 7')
    a('s_lshl_b32 s13, s3, 11')
    a('s_waitcnt lgkmcnt(0)')
    a.srd(40, 28, 29, 1792 * 896)
    a.srd(44, 34, 35, H_BYTES, H_OFF)
    a.srd(48, 34, 35, 448 * YP, YT_OFF)
    a.srd(52, 34, 35, 448 * 896, G_OFF)
    def issue(c):
        slot = (c % NS) * 16384
        if c < NH:
            sw, sh = 40, 44
            a('s_add_u32 s14, s10, %d' % (c * 64 * 896))
            a('s_add_u32 s15, s11, %d' % (c * 128))
            vb = (10, 11)
        else:
            sw, sh = 52, 48
            cc = c - NH
            a('s_add_u32 s14, s10, %d' % (cc * 64 * 896))
            a('s_add_u32 s15, s12, %d' % (cc * 64 * YP))
            vb = (8, 9)
        for q in range(2):
            a('s_add_u32 s60, s13, %d' % (slot + q * 1024))
            a('s_mov_b32 m0, s60')
            a('s_add_u32 s60, s60, 8192')
            a('buffer_load_dwordx4 v%d, s[%d:%d], s14 offen lds' % (6 + q, sw, sw + 3))
            a('s_mov_b32 m0, s60')
            a.nop(1)
            a('buffer_load_dwordx4 v%d, s[%d:%d], s15 offen lds' % (vb[q], sh, sh + 3))
    for c in range(NS - 1):
        issue(c)
    for c in range(NC):
        later = min(NS - 2, NC - 1 - c)
        a('s_waitcnt vmcnt(%d)' % (4 * later))
        a('s_barrier')
        if c + NS - 1 < NC:
            issue(c + NS - 1)
    a('s_endpgm')
    a.label('L_k3_cons')
    a('s_lshr_b32 s6, s3, 1')
    a('s_and_b32 s7, s3, 1')
    a('v_and_b32 v12, 31, v2')
    a('s_lshl_b32 s8, s6, 5')
    a('v_add_u32 v12, s8, v12')
    a('v_lshrrev_b32 v13, 5, v2')
    a('v_mul_u32_u24 v14, 896, v12')
    a('v_lshl_add_u32 v14, v13, 5, v14')
    a('s_lshl_b32 s8, s7, 6')
    a('v_add_u32 v14, s8, v14')
    a('s_mul_i32 s9, s4, %d' % (64 * 896))
    a('s_add_u32 s9, s9, s10')
    a('s_waitcnt lgkmcnt(0)')
    a.srd(36, 16, 17, XN_BYTES)
    a.srd(56, 30, 31, XN_BYTES)
    XR = 24
    a('buffer_load_dwordx4 %s, v14, s[36:39], s9 offen' % vr(XR, 4))
    a('buffer_load_dwordx4 %s, v14, s[36:39], s9 offen offset:16' % vr(XR + 4, 4))
    stamp(a, 1)
    a('v_lshrrev_b32 v3, 4, v2')
    a('v_and_b32 v4, 15, v2')
    a('v_lshrrev_b32 v5, 2, v4')
    a('v_and_b32 v4, 3, v4')
    a('v_lshrrev_b32 v15, 1, v3')
    a('v_lshl_add_u32 v15, v15, 3, v5')
    a('v_lshlrev_b32 v15, 7, v15')
    a('v_lshrrev_b32 v16, 1, v5')
    a('v_lshlrev_b32 v16, 2, v16')
    a('v_and_b32 v17, 1, v4')
    a('v_lshlrev_b32 v17, 1, v17')
    a('v_and_b32 v18, 1, v3')
    a('v_add_u32 v17, v17, v18')
    a('s_lshl_b32 s8, s7, 2')
    a('v_add_u32 v17, s8, v17')
    a('v_xor_b32 v17, v17, v16')
    a('v_lshl_add_u32 v17, v17, 4, v15')
    a('v_lshrrev_b32 v18, 1, v4')
    a('v_lshl_add_u32 v17, v18, 3, v17')
    a('v_and_b32 v18, 1, v3')
    a('v_lshlrev_b32 v18, 1, v18')
    a('v_lshrrev_b32 v19, 1, v4')
    a('v_add_u32 v18, v18, v19')
    a('s_lshl_b32 s8, s6, 2')
    a('v_add_u32 v18, s8, v18')
    a('v_xor_b32 v18, v18, v16')
    a('v_lshl_add_u32 v18, v18, 4, v15')
    a('v_and_b32 v19, 1, v4')
    a('v_lshl_add_u32 v18, v19, 3, v18')
    a('v_add_u32 v18, 8192, v18')
    a('v_bfe_u32 v19, v12, 1, 3')
    for ks in range(4):
        a('v_add_u32 v%d, %d, v13' % (20 + ks, 2 * ks))
        a('v_xor_b32 v%d, v%d, v19' % (20 + ks, 20 + ks))
        a('v_lshlrev_b32 v%d, 4, v%d' % (20 + ks, 20 + ks))
        a('v_lshl_add_u32 v%d, v12, 7, v%d' % (20 + ks, 20 + ks))
        a('v_add_u32 v%d, 8192, v%d' % (20 + ks, 20 + ks))
    a('v_add_u32 v48, 0x10000, v17')
    a('v_add_u32 v49, 0x10000, v18')
    for ks in range(4):
        a('v_add_u32 v%d, 0x10000, v%d' % (50 + ks, 20 + ks))
    ACCB, ACCA = 64, 80
    for i in range(32):
        a('v_mov_b32 v%d, 0' % (ACCB + i))
    FA = [32, 40]
    def rd(c, ks, buf):
        slot = (c % NS) * 16384
        hiset = slot >= 65536
        slot &= 65535
        va, vy, vh = (48, 49, 50) if hiset else (17, 18, 20)
        for h in range(2):
            a('ds_read_b64_tr_b16 %s, v%d offset:%d' % (vr(buf + 2 * h, 2), va, slot + ks * 2048 + h * 512))
        if c < NH:
            a('ds_read_b128 %s, v%d offset:%d' % (vr(buf + 4, 4), vh + ks, slot))
            return 3
        for h in range(2):
            a('ds_read_b64_tr_b16 %s, v%d offset:%d' % (vr(buf + 4 + 2 * h, 2), vy, slot + ks * 2048 + h * 512))
        return 4
    a('s_barrier')
    rd(0, 0, FA[0])
    for c in range(NC):
        if c % 4 == 0: stamp(a, 2 + c // 4)
        acc = ACCB if c < NH else ACCA
        for ks in range(4):
            cur = FA[ks & 1]
            if ks < 3:
                n = rd(c, ks + 1, FA[(ks + 1) & 1])
                a('s_waitcnt lgkmcnt(%d)' % n)
            else:
                a('s_waitcnt lgkmcnt(0)')
                if c + 1 < NC:
                    a('s_barrier')
                    rd(c + 1, 0, FA[0])
            a('v_mfma_f32_32x32x16_bf16 %s, %s, %s, %s' % (vr(acc, 16), vr(cur, 4), vr(cur + 4, 4), vr(acc, 16)))
    a.nop(14)
    stamp(a, 11)
    a('s_waitcnt vmcnt(0)')
    T = 32
    for p in range(8):
        a0, a1 = ACCA + 2 * p, ACCA + 2 * p + 1
        b0, b1 = ACCB + 2 * p, ACCB + 2 * p + 1
        a('v_cvt_pk_bf16_f32 v%d, v%d, v%d' % (T, a0, a1))
        a('v_cvt_pk_bf16_f32 v%d, v%d, v%d' % (T + 1, b0, b1))
        a('v_lshlrev_b32 v%d, 16, v%d' % (a0, T))
        a('v_and_b32 v%d, 0xffff0000, v%d' % (a1, T))
        a('v_lshlrev_b32 v%d, 16, v%d' % (b0, T + 1))
        a('v_and_b32 v%d, 0xffff0000, v%d' % (b1, T + 1))
        a('v_lshlrev_b32 v%d, 16, v%d' % (T + 2, XR + p))
        a('v_and_b32 v%d, 0xffff0000, v%d' % (T + 3, XR + p))
        a('v_add_f32 v%d, v%d, v%d' % (T + 2, T + 2, a0))
        a('v_add_f32 v%d, v%d, v%d' % (T + 3, T + 3, a1))
        a('v_cvt_pk_bf16_f32 v%d, v%d, v%d' % (T, T + 2, T + 3))
        a('v_lshlrev_b32 v%d, 16, v%d' % (T + 2, T))
        a('v_and_b32 v%d, 0xffff0000, v%d' % (T + 3, T))
        a('v_add_f32 v%d, v%d, v%d' % (T + 2, T + 2, b0))
        a('v_add_f32 v%d, v%d, v%d' % (T + 3, T + 3, b1))
        a('v_cvt_pk_bf16_f32 v%d, v%d, v%d' % (40 + p, T + 2, T + 3))
    a('buffer_store_dwordx4 v[40:43], v14, s[56:59], s9 offen')
    a('buffer_store_dwordx4 v[44:47], v14, s[56:59], s9 offen offset:16')
    stamp(a, 12)
    a('s_waitcnt vmcnt(0)') if STAMPS else None
    stamp(a, 13)
    dump_stamps(a, 14, 100, 'k3')
    a.label('L_k3_end')
    a('s_endpgm')
    return a.text(), 96, NS * 16384
```

```python
from asmlib import *
from k0 import *

def gen_k0():
    a = Asm()
    PITCH = 928
    SWG = int(os.environ.get('STAMPWG', '100'))
    inv448 = f32bits(1.0 / 448.0)
    a('s_cmp_ge_u32 s2, 256')
    a('s_cbranch_scc1 L_k0_end')
    stamp(a, 0)
    load_ptrs(a)
    a('v_lshrrev_b32 v1, 6, v0')
    a('s_lshr_b32 s3, s2, 2')
    a('s_and_b32 s4, s2, 3')
    a('v_readfirstlane_b32 s6, v1')
    a('s_mov_b32 s7, 0x%x' % inv448)
    a('v_lshrrev_b32 v1, 4, v0')
    a('v_and_b32 v2, 15, v0')
    a('v_mul_u32_u24 v3, 896, v1')
    a('v_lshl_add_u32 v3, v2, 3, v3')
    a('s_mul_i32 s5, s3, 28672')
    a('s_waitcnt lgkmcnt(0)')
    a.srd(36, 16, 17, XN_BYTES)
    a.srd(40, 34, 35, XN_BYTES, XN_OFF)
    for i in range(7):
        a('buffer_load_dwordx2 %s, v3, s[36:39], s5 offen offset:%d' % (vr(8 + 2 * i, 2), 128 * i))
    a('s_cmp_ge_u32 s6, 4')
    a('s_cbranch_scc1 L_k0_bgen')
    a('s_waitcnt vmcnt(0)')
    a.srd(52, 18, 19, 2048 * 225 * 2)
    a.srd(56, 20, 21, 2048 * 225 * 2)
    a.srd(60, 34, 35, WT_BYTES, WT_OFF)
    a('s_lshl_b32 s8, s4, 3')
    a('s_lshl_b32 s8, s8, 6')
    a('s_add_u32 s8, s8, s3')
    a('s_mul_i32 s8, s8, 450')
    a('v_lshlrev_b32 v36, 1, v0')
    for e in range(8):
        for pl in range(2):
            a('s_add_u32 s9, s8, %d' % (e * 64 * 450))
            a('buffer_load_ushort v%d, v36, s[%d:%d], s9 offen' % (112 + 8 * pl + e, 52 + 4 * pl, 55 + 4 * pl))
    if PREFETCH:
        a('s_lshl_b32 s9, s2, 12')
        a('v_lshl_add_u32 v37, v0, 4, s9')
        a('s_mov_b32 s9, 0x100000')
        PS = [64, 68, 12]
        for m in range(3):
            a.srd(PS[m], 24 + 2 * m, 25 + 2 * m, 448 * 3584)
        for m in (2, 0, 1):
            a('buffer_load_dwordx4 %s, v37, s[%d:%d], 0 offen' % (vr(136 + 4 * m, 4), PS[m], PS[m] + 3))
            a('buffer_load_dwordx4 %s, v37, s[%d:%d], s9 offen' % (vr(148 + 4 * (m & 1), 4), PS[m], PS[m] + 3))
    a('s_branch L_k0_ln')
    a.label('L_k0_bgen')
    a('v_and_b32 v4, 15, v0')
    a('v_bfe_u32 v5, v0, 6, 2')
    a('v_lshl_add_u32 v4, v5, 4, v4')
    a('s_lshl_b32 s8, s4, 6')
    a('v_add_u32 v4, s8, v4')
    a('v_bfe_u32 v5, v0, 4, 2')
    a('v_lshlrev_b32 v5, 3, v5')
    BF = 100
    CA, SA, CB, SB = 40, 48, 56, 64
    P2, P4, P32 = 72, 74, 76
    def evalcs(dc, ds, t):
        mod448(a, t, t + 1, t + 2)
        a('v_cvt_f32_u32 v%d, v%d' % (t + 2, t + 2))
        a('v_mul_f32 v%d, s7, v%d' % (t + 2, t + 2))
        a('v_cos_f32 v%d, v%d' % (dc, t + 2))
        a('v_sin_f32 v%d, v%d' % (ds, t + 2))
    a('v_mul_u32_u24 v80, v5, v4')
    a('v_add_u32 v83, v80, v4')
    a('v_lshlrev_b32 v86, 1, v4')
    a('v_lshlrev_b32 v89, 2, v4')
    a('v_lshlrev_b32 v92, 5, v4')
    evalcs(CA, SA, 80)
    evalcs(CA + 1, SA + 1, 83)
    evalcs(P2, P2 + 1, 86)
    evalcs(P4, P4 + 1, 89)
    evalcs(P32, P32 + 1, 92)
    a.nop(1)
    def rotblk(Cd, Sd, Cs, Ss, P):
        a('v_pk_mul_f32 %s, %s, %s op_sel:[0,0] op_sel_hi:[1,0]' % (vr(Cd, 2), vr(Cs, 2), vr(P, 2)))
        a('v_pk_mul_f32 %s, %s, %s op_sel:[0,0] op_sel_hi:[1,0]' % (vr(Sd, 2), vr(Ss, 2), vr(P, 2)))
        a('v_pk_fma_f32 %s, %s, %s, %s op_sel:[0,1,0] op_sel_hi:[1,1,1] neg_lo:[1,0,0] neg_hi:[1,0,0]' % (vr(Cd, 2), vr(Ss, 2), vr(P, 2), vr(Cd, 2)))
        a('v_pk_fma_f32 %s, %s, %s, %s op_sel:[0,1,0] op_sel_hi:[1,1,1]' % (vr(Sd, 2), vr(Cs, 2), vr(P, 2), vr(Sd, 2)))
    rotblk(CA + 2, SA + 2, CA, SA, P2)
    rotblk(CA + 4, SA + 4, CA, SA, P4)
    rotblk(CA + 6, SA + 6, CA + 2, SA + 2, P4)
    bufs = [(CA, SA), (CB, SB)]
    for t in range(14):
        C0, S0 = bufs[t & 1]
        C1, S1 = bufs[(t + 1) & 1]
        if t + 1 < 14:
            for q in range(4):
                rotblk(C1 + 2 * q, S1 + 2 * q, C0 + 2 * q, S0 + 2 * q, P32)
        for q in range(4):
            a('v_cvt_pk_bf16_f32 v%d, v%d, v%d' % (BF + 8 * t + q, C0 + 2 * q, C0 + 2 * q + 1))
            a('v_cvt_pk_bf16_f32 v%d, -v%d, -v%d' % (BF + 8 * t + 4 + q, S0 + 2 * q, S0 + 2 * q + 1))
    a('v_and_b32 v36, 15, v0')
    a('v_lshrrev_b32 v37, 2, v36')
    a('v_and_b32 v36, 3, v36')
    a('v_lshl_add_u32 v36, v37, 3, v36')
    a('v_mul_u32_u24 v36, %d, v36' % PITCH)
    a('v_lshl_add_u32 v36, v5, 1, v36')
    a('v_lshlrev_b32 v37, 13, v4')
    a('v_lshl_add_u32 v37, v5, 1, v37')
    a('v_add_u32 v38, 4096, v37')
    a.srd(44, 34, 35, ZT_BYTES, ZT_OFF)
    a('s_waitcnt vmcnt(0)')
    a.label('L_k0_ln')
    stamp(a, 3)
    F0 = 40
    for i in range(14):
        a('v_lshlrev_b32 v%d, 16, v%d' % (F0 + 2 * i, 8 + i))
        a('v_and_b32 v%d, 0xffff0000, v%d' % (F0 + 2 * i + 1, 8 + i))
    a('v_pk_add_f32 v[72:73], %s, %s' % (vr(F0, 2), vr(F0 + 4, 2)))
    a('v_pk_add_f32 v[74:75], %s, %s' % (vr(F0 + 2, 2), vr(F0 + 6, 2)))
    for i in range(4, 14):
        acc = 72 + 2 * (i & 1)
        a('v_pk_add_f32 %s, %s, %s' % (vr(acc, 2), vr(acc, 2), vr(F0 + 2 * i, 2)))
    a('v_pk_add_f32 v[72:73], v[72:73], v[74:75]')
    a('v_add_f32 v72, v72, v73')
    def red16(r):
        for ctl in ('quad_perm:[1,0,3,2]', 'quad_perm:[2,3,0,1]', 'row_half_mirror', 'row_mirror'):
            a.nop(2)
            a('v_add_f32_dpp v%d, v%d, v%d %s row_mask:0xf bank_mask:0xf' % (r, r, r, ctl))
    red16(72)
    a('v_mul_f32 v76, s7, v72')
    SUBM = ' op_sel_hi:[1,0] neg_lo:[0,1] neg_hi:[0,1]'
    for i in range(14):
        acc = 72 + 2 * (i & 1)
        t = 80 + 2 * (i & 3)
        a('v_pk_add_f32 %s, %s, v[76:77]%s' % (vr(t, 2), vr(F0 + 2 * i, 2), SUBM))
        if i < 2:
            a('v_pk_mul_f32 %s, %s, %s' % (vr(acc, 2), vr(t, 2), vr(t, 2)))
        else:
            a('v_pk_fma_f32 %s, %s, %s, %s' % (vr(acc, 2), vr(t, 2), vr(t, 2), vr(acc, 2)))
    a('v_pk_add_f32 v[72:73], v[72:73], v[74:75]')
    a('v_add_f32 v72, v72, v73')
    red16(72)
    a('v_mul_f32 v72, s7, v72')
    a('v_cvt_pk_bf16_f32 v74, v76, v72')
    a('v_lshlrev_b32 v76, 16, v74')
    a('v_and_b32 v72, 0xffff0000, v74')
    a('v_add_f32 v72, 0x%x, v72' % f32bits(1e-5))
    a('v_cvt_pk_bf16_f32 v72, v72, v72')
    a('v_lshlrev_b32 v72, 16, v72')
    a('v_sqrt_f32 v72, v72')
    a.nop(1)
    a('v_cvt_pk_bf16_f32 v72, v72, v72')
    a('v_lshlrev_b32 v72, 16, v72')
    a('v_rcp_f32 v78, v72')
    a.nop(1)
    for i in range(14):
        x0 = F0 + 2 * i
        a('v_pk_add_f32 %s, %s, v[76:77]%s' % (vr(x0, 2), vr(x0, 2), SUBM))
        a('v_cvt_pk_bf16_f32 v75, v%d, v%d' % (x0, x0 + 1))
        a('v_lshlrev_b32 v%d, 16, v75' % x0)
        a('v_and_b32 v%d, 0xffff0000, v75' % (x0 + 1))
        a('v_pk_mul_f32 %s, %s, v[78:79] op_sel_hi:[1,0]' % (vr(x0, 2), vr(x0, 2)))
        a('v_cvt_pk_bf16_f32 v%d, v%d, v%d' % (8 + i, x0, x0 + 1))
    a('v_mul_u32_u24 v74, %d, v1' % PITCH)
    a('v_lshl_add_u32 v74, v2, 3, v74')
    for i in range(7):
        a('ds_write_b64 v74, %s offset:%d' % (vr(8 + 2 * i, 2), 128 * i))
    a('s_waitcnt lgkmcnt(0)')
    stamp(a, 4)
    a('s_barrier')
    def xn_store(lbl):
        a('s_cmp_lg_u32 s4, 0')
        a('s_cbranch_scc1 L_k0_noxn%s' % lbl)
        for i in range(7):
            a('buffer_store_dwordx2 %s, v3, s[40:43], s5 offen offset:%d' % (vr(8 + 2 * i, 2), 128 * i))
        a.label('L_k0_noxn%s' % lbl)
    a('s_cmp_ge_u32 s6, 4')
    a('s_cbranch_scc1 L_k0_mfma')
    a('s_waitcnt vmcnt(%d)' % (6 if PREFETCH else 0))
    a('v_cmp_gt_u32 vcc, 225, v0')
    a('s_and_saveexec_b64 s[10:11], vcc')
    a('s_cbranch_execz L_k0_wt_restore')
    a('v_lshlrev_b32 v36, 13, v0')
    for pl in range(2):
        for q in range(4):
            a('v_lshl_or_b32 v%d, v%d, 16, v%d' % (128 + 4 * pl + q, 112 + 8 * pl + 2 * q + 1, 112 + 8 * pl + 2 * q))
    a('s_lshl_b32 s8, s3, 6')
    a('s_lshl_b32 s9, s4, 4')
    a('s_add_u32 s8, s8, s9')
    a('s_add_u32 s9, s8, 4096')
    a('buffer_store_dwordx4 v[128:131], v36, s[60:63], s8 offen')
    a('buffer_store_dwordx4 v[132:135], v36, s[60:63], s9 offen')
    a.label('L_k0_wt_restore')
    a('s_mov_b64 exec, s[10:11]')
    xn_store('a')
    stamp(a, 5)
    if os.environ.get('WAVEST0'): dump_wave_stamps(a, [0, 3, 4, 5], SWG, 'k0a')
    a('s_endpgm')
    a.label('L_k0_mfma')
    ACC = 80
    a('s_lshl_b32 s6, s3, 6')
    AF = [40, 48, 56]
    def rd(t):
        buf = AF[t % 3]
        a('ds_read_b128 %s, v36 offset:%d' % (vr(buf, 4), 64 * t))
        a('ds_read_b128 %s, v36 offset:%d' % (vr(buf + 4, 4), 64 * t + 4 * PITCH))
    rd(0)
    rd(1)
    for t in range(14):
        cur = AF[t % 3]
        if t + 2 < 14:
            rd(t + 2)
            a('s_waitcnt lgkmcnt(4)')
        elif t + 1 < 14:
            a('s_waitcnt lgkmcnt(2)')
        else:
            a('s_waitcnt lgkmcnt(0)')
        for mt in range(2):
            for c in range(2):
                d = ACC + 8 * mt + 4 * c
                a('v_mfma_f32_16x16x32_bf16 %s, %s, %s, %s' % (vr(d, 4), vr(cur + 4 * mt, 4), vr(BF + 8 * t + 4 * c, 4), '0' if t == 0 else vr(d, 4)))
    a.nop(10)
    for c in range(2):
        o = 64 + 4 * c
        for mt in range(2):
            d = ACC + 8 * mt + 4 * c
            a('v_cvt_pk_bf16_f32 v%d, v%d, v%d' % (o + 2 * mt, d, d + 1))
            a('v_cvt_pk_bf16_f32 v%d, v%d, v%d' % (o + 2 * mt + 1, d + 2, d + 3))
        a('buffer_store_dwordx4 %s, v%d, s[44:47], s6 offen' % (vr(o, 4), 37 + c))
    xn_store('b')
    a('s_waitcnt vmcnt(0)') if STAMPS else None
    stamp(a, 5)
    if os.environ.get('WAVEST0'): dump_wave_stamps(a, [0, 3, 4, 5], SWG, 'k0b')
    if os.environ.get('ALLWG'):
        a('v_cmp_eq_u32 vcc, 256, v0')
        a('s_and_saveexec_b64 s[62:63], vcc')
        a.srd(40, 34, 35, 1 << 20, 32 << 20)
        a('s_lshl_b32 s8, s2, 5')
        a('v_mov_b32 v1, s8')
        for k, i in enumerate([0, 3, 4, 5]):
            a('v_mov_b32 v2, s%d' % (74 + 2 * i))
            a('v_mov_b32 v3, s%d' % (75 + 2 * i))
            a('buffer_store_dwordx2 v[2:3], v1, s[40:43], 0 offen offset:%d' % (8 * k))
            a.nop(2)
    a.label('L_k0_end')
    a('s_endpgm')
    return a.text(), 212, 32 * PITCH
```

```python
from asmlib import *
from k0 import *
import os

def gen_k3():
    a = Asm()
    NS = int(os.environ.get('K3NS', '6'))
    NH = 28
    NY = 7
    NC = NH + NY
    a('s_cmp_ge_u32 s2, 224')
    a('s_cbranch_scc1 L_k3_end')
    stamp(a, 0)
    load_ptrs(a)
    a('v_lshrrev_b32 v1, 6, v0')
    a('v_and_b32 v2, 63, v0')
    a('v_readfirstlane_b32 s3, v1')
    a('s_and_b32 s4, s2, 7')
    a('s_lshr_b32 s5, s2, 3')
    a('s_and_b32 s6, s5, 3')
    a('s_lshl_b32 s4, s4, 2')
    a('s_add_u32 s4, s4, s6')
    a('s_lshr_b32 s5, s5, 2')
    a('s_lshl_b32 s10, s5, 7')
    a('s_cmp_lt_u32 s3, 4')
    a('s_cbranch_scc1 L_k3_cons')
    a('s_sub_u32 s3, s3, 4')
    a('v_subrev_u32 v1, 4, v1')
    a('v_lshrrev_b32 v3, 3, v2')
    a('v_lshl_add_u32 v3, v1, 4, v3')
    a('v_and_b32 v4, 7, v2')
    a('v_bfe_u32 v5, v2, 4, 1')
    a('v_lshlrev_b32 v5, 2, v5')
    a('v_xor_b32 v5, v4, v5')
    a('v_mul_u32_u24 v6, 896, v3')
    a('v_lshl_add_u32 v6, v5, 4, v6')
    a('v_add_u32 v7, 7168, v6')
    a('v_mul_u32_u24 v8, %d, v3' % YP)
    a('v_lshl_add_u32 v8, v5, 4, v8')
    a('v_add_u32 v9, %d, v8' % (8 * YP))
    a('v_lshrrev_b32 v10, 4, v2')
    a('v_xor_b32 v11, v4, v10')
    a('v_mul_u32_u24 v12, %d, v3' % HP)
    a('v_lshl_add_u32 v10, v11, 4, v12')
    a('v_xor_b32 v11, 4, v11')
    a('v_lshl_add_u32 v11, v11, 4, v12')
    a('v_add_u32 v11, %d, v11' % (8 * HP))
    a('s_mul_i32 s11, s4, %d' % (64 * HP))
    a('s_lshl_b32 s12, s4, 7')
    a('s_lshl_b32 s13, s3, 11')
    a('s_waitcnt lgkmcnt(0)')
    a.srd(40, 28, 29, 1792 * 896)
    a.srd(44, 34, 35, H_BYTES, H_OFF)
    a.srd(48, 34, 35, 448 * YP, YT_OFF)
    a.srd(52, 34, 35, 448 * 896, G_OFF)
    def issue(c):
        slot = (c % NS) * 16384
        if c < NH:
            sw, sh = 40, 44
            a('s_add_u32 s14, s10, %d' % (c * 64 * 896))
            a('s_add_u32 s15, s11, %d' % (c * 128))
            vb = (10, 11)
        else:
            sw, sh = 52, 48
            cc = c - NH
            a('s_add_u32 s14, s10, %d' % (cc * 64 * 896))
            a('s_add_u32 s15, s12, %d' % (cc * 64 * YP))
            vb = (8, 9)
        for q in range(2):
            a('s_add_u32 s60, s13, %d' % (slot + q * 1024))
            if c < NH:
                a('s_mov_b32 m0, s60')
            a('s_add_u32 s60, s60, 8192')
            if c < NH:
                a('buffer_load_dwordx4 v%d, s[%d:%d], s14 offen lds' % (6 + q, sw, sw + 3))
            a('s_mov_b32 m0, s60')
            a.nop(1)
            a('buffer_load_dwordx4 v%d, s[%d:%d], s15 offen lds' % (vb[q], sh, sh + 3))
    for c in range(NS - 1):
        issue(c)
    for c in range(NC):
        later = min(NS - 2, NC - 1 - c)
        a('s_waitcnt vmcnt(%d)' % sum(4 if c2 < NH else 2 for c2 in range(c + 1, c + 1 + later)))
        a('s_barrier')
        if c + NS - 1 < NC:
            issue(c + NS - 1)
    a('s_endpgm')
    a.label('L_k3_cons')
    a('s_lshr_b32 s6, s3, 1')
    a('s_and_b32 s7, s3, 1')
    a('v_and_b32 v12, 31, v2')
    a('s_lshl_b32 s8, s6, 5')
    a('v_add_u32 v12, s8, v12')
    a('v_lshrrev_b32 v13, 5, v2')
    a('v_mul_u32_u24 v14, 896, v12')
    a('v_lshl_add_u32 v14, v13, 5, v14')
    a('s_lshl_b32 s8, s7, 6')
    a('v_add_u32 v14, s8, v14')
    a('s_mul_i32 s9, s4, %d' % (64 * 896))
    a('s_add_u32 s9, s9, s10')
    a('s_waitcnt lgkmcnt(0)')
    a.srd(36, 16, 17, XN_BYTES)
    a.srd(56, 30, 31, XN_BYTES)
    XR = 24
    a('buffer_load_dwordx4 %s, v14, s[36:39], s9 offen' % vr(XR, 4))
    a('buffer_load_dwordx4 %s, v14, s[36:39], s9 offen offset:16' % vr(XR + 4, 4))
    stamp(a, 1)
    a('v_lshrrev_b32 v3, 4, v2')
    a('v_and_b32 v4, 15, v2')
    a('v_lshrrev_b32 v5, 2, v4')
    a('v_and_b32 v4, 3, v4')
    a('v_lshrrev_b32 v15, 1, v3')
    a('v_lshl_add_u32 v15, v15, 3, v5')
    a('v_lshlrev_b32 v15, 7, v15')
    a('v_lshrrev_b32 v16, 1, v5')
    a('v_lshlrev_b32 v16, 2, v16')
    a('v_and_b32 v17, 1, v4')
    a('v_lshlrev_b32 v17, 1, v17')
    a('v_and_b32 v18, 1, v3')
    a('v_add_u32 v17, v17, v18')
    a('s_lshl_b32 s8, s7, 2')
    a('v_add_u32 v17, s8, v17')
    a('v_xor_b32 v17, v17, v16')
    a('v_lshl_add_u32 v17, v17, 4, v15')
    a('v_lshrrev_b32 v18, 1, v4')
    a('v_lshl_add_u32 v17, v18, 3, v17')
    a('v_and_b32 v18, 1, v3')
    a('v_lshlrev_b32 v18, 1, v18')
    a('v_lshrrev_b32 v19, 1, v4')
    a('v_add_u32 v18, v18, v19')
    a('s_lshl_b32 s8, s6, 2')
    a('v_add_u32 v18, s8, v18')
    a('v_xor_b32 v18, v18, v16')
    a('v_lshl_add_u32 v18, v18, 4, v15')
    a('v_and_b32 v19, 1, v4')
    a('v_lshl_add_u32 v18, v19, 3, v18')
    a('v_add_u32 v18, 8192, v18')
    a('v_bfe_u32 v19, v12, 1, 3')
    for ks in range(4):
        a('v_add_u32 v%d, %d, v13' % (20 + ks, 2 * ks))
        a('v_xor_b32 v%d, v%d, v19' % (20 + ks, 20 + ks))
        a('v_lshlrev_b32 v%d, 4, v%d' % (20 + ks, 20 + ks))
        a('v_lshl_add_u32 v%d, v12, 7, v%d' % (20 + ks, 20 + ks))
        a('v_add_u32 v%d, 8192, v%d' % (20 + ks, 20 + ks))
    a('v_add_u32 v48, 0x10000, v17')
    a('v_add_u32 v49, 0x10000, v18')
    for ks in range(4):
        a('v_add_u32 v%d, 0x10000, v%d' % (50 + ks, 20 + ks))
    GF = 100
    GC, GS = 212, 216
    C8, S8 = 228, 229
    a('v_and_b32 v4, 15, v2')
    a('v_bfe_u32 v5, v4, 2, 1')
    a('v_lshlrev_b32 v5, 4, v5')
    a('v_and_b32 v15, 1, v3')
    a('v_lshl_add_u32 v5, v15, 3, v5')
    a('v_lshrrev_b32 v15, 3, v4')
    a('v_lshl_add_u32 v5, v15, 2, v5')
    a('v_and_b32 v15, 3, v4')
    a('v_add_u32 v5, v5, v15')
    a('s_lshl_b32 s8, s7, 5')
    a('s_lshl_b32 s11, s5, 6')
    a('s_add_u32 s8, s8, s11')
    a('v_add_u32 v5, s8, v5')
    a('v_lshlrev_b32 v15, 2, v13')
    a('s_mov_b32 s11, 0x%x' % f32bits(1.0 / 448.0))
    a('s_mov_b32 s12, 0x%x' % f32bits(2.0 / 448.0 / 2048.0))
    def evalcs(dc, ds, t):
        mod448(a, t, t + 1, t + 2)
        a('v_cvt_f32_u32 v%d, v%d' % (t + 2, t + 2))
        a('v_mul_f32 v%d, s11, v%d' % (t + 2, t + 2))
        a('v_cos_f32 v%d, v%d' % (dc, t + 2))
        a('v_sin_f32 v%d, v%d' % (ds, t + 2))
    for r in range(4):
        a('v_add_u32 v56, %d, v15' % r)
        a('v_mul_u32_u24 v56, v56, v5')
        evalcs(GC + r, GS + r, 56)
    a('v_lshlrev_b32 v56, 3, v5')
    evalcs(C8, S8, 56)
    a.nop(1)
    for r in range(4):
        a('v_mul_f32 v%d, s12, v%d' % (GC + r, GC + r))
        a('v_mul_f32 v%d, s12, v%d' % (GS + r, GS + r))
    a('v_and_b32 v56, 1, v5')
    a('v_lshlrev_b32 v56, 31, v56')
    a('v_mov_b32 v57, 0x%x' % f32bits(1.0 / 448.0 / 2048.0))
    a('v_xor_b32 v56, v56, v57')
    a('v_cvt_pk_bf16_f32 v230, v57, v56')
    a('v_cmp_eq_u32 vcc, 0, v13')
    def gstep(q):
        ops = []
        c0, s0 = GC + 8 * (q & 1), GS + 8 * (q & 1)
        c1, s1 = GC + 8 * ((q + 1) & 1), GS + 8 * ((q + 1) & 1)
        for r in range(4):
            ops.append('v_cvt_pk_bf16_f32 v%d, v%d, -v%d' % (GF + 4 * q + r, c0 + r, s0 + r))
        if q == 0:
            ops.append('v_cndmask_b32 v%d, v%d, v230, vcc' % (GF, GF))
        if q + 1 < 28:
            for r in range(4):
                ops.append('v_mul_f32 v%d, v%d, v%d' % (c1 + r, c0 + r, C8))
                ops.append('v_mul_f32 v%d, v%d, v%d' % (s1 + r, s0 + r, C8))
                ops.append('v_fma_f32 v%d, -v%d, v%d, v%d' % (c1 + r, s0 + r, S8, c1 + r))
                ops.append('v_fmac_f32 v%d, v%d, v%d' % (s1 + r, c0 + r, S8))
        return ops
    ACCB, ACCA = 64, 80
    for i in range(32):
        a('v_mov_b32 v%d, 0' % (ACCB + i))
    FA = [32, 40]
    def rd(c, ks, buf):
        slot = (c % NS) * 16384
        hiset = slot >= 65536
        slot &= 65535
        va, vy, vh = (48, 49, 50) if hiset else (17, 18, 20)
        if c < NH:
            for h in range(2):
                a('ds_read_b64_tr_b16 %s, v%d offset:%d' % (vr(buf + 2 * h, 2), va, slot + ks * 2048 + h * 512))
            a('ds_read_b128 %s, v%d offset:%d' % (vr(buf + 4, 4), vh + ks, slot))
            return 3
        for h in range(2):
            a('ds_read_b64_tr_b16 %s, v%d offset:%d' % (vr(buf + 4 + 2 * h, 2), vy, slot + ks * 2048 + h * 512))
        return 2
    a('s_barrier')
    rd(0, 0, FA[0])
    for c in range(NC):
        if c % 4 == 0: stamp(a, 2 + c // 4)
        acc = ACCB if c < NH else ACCA
        for ks in range(4):
            cur = FA[ks & 1]
            if ks < 3:
                n = rd(c, ks + 1, FA[(ks + 1) & 1])
                a('s_waitcnt lgkmcnt(%d)' % n)
            else:
                a('s_waitcnt lgkmcnt(0)')
                if c + 1 < NC:
                    a('s_barrier')
                    rd(c + 1, 0, FA[0])
            asrc = cur if c < NH else GF + 4 * (4 * (c - NH) + ks)
            a('v_mfma_f32_32x32x16_bf16 %s, %s, %s, %s' % (vr(acc, 16), vr(asrc, 4), vr(cur + 4, 4), vr(acc, 16)))
            if c < NH:
                g = gstep(c)
                n = (len(g) + 3) // 4
                for ln in g[ks * n:(ks + 1) * n]: a(ln)
    a.nop(14)
    stamp(a, 11)
    a('s_waitcnt vmcnt(0)')
    T = 32
    for p in range(8):
        a0, a1 = ACCA + 2 * p, ACCA + 2 * p + 1
        b0, b1 = ACCB + 2 * p, ACCB + 2 * p + 1
        a('v_cvt_pk_bf16_f32 v%d, v%d, v%d' % (T, a0, a1))
        a('v_cvt_pk_bf16_f32 v%d, v%d, v%d' % (T + 1, b0, b1))
        a('v_lshlrev_b32 v%d, 16, v%d' % (a0, T))
        a('v_and_b32 v%d, 0xffff0000, v%d' % (a1, T))
        a('v_lshlrev_b32 v%d, 16, v%d' % (b0, T + 1))
        a('v_and_b32 v%d, 0xffff0000, v%d' % (b1, T + 1))
        a('v_lshlrev_b32 v%d, 16, v%d' % (T + 2, XR + p))
        a('v_and_b32 v%d, 0xffff0000, v%d' % (T + 3, XR + p))
        a('v_add_f32 v%d, v%d, v%d' % (T + 2, T + 2, a0))
        a('v_add_f32 v%d, v%d, v%d' % (T + 3, T + 3, a1))
        a('v_cvt_pk_bf16_f32 v%d, v%d, v%d' % (T, T + 2, T + 3))
        a('v_lshlrev_b32 v%d, 16, v%d' % (T + 2, T))
        a('v_and_b32 v%d, 0xffff0000, v%d' % (T + 3, T))
        a('v_add_f32 v%d, v%d, v%d' % (T + 2, T + 2, b0))
        a('v_add_f32 v%d, v%d, v%d' % (T + 3, T + 3, b1))
        a('v_cvt_pk_bf16_f32 v%d, v%d, v%d' % (40 + p, T + 2, T + 3))
    a('buffer_store_dwordx4 v[40:43], v14, s[56:59], s9 offen')
    a('buffer_store_dwordx4 v[44:47], v14, s[56:59], s9 offen offset:16')
    stamp(a, 12)
    a('s_waitcnt vmcnt(0)') if STAMPS else None
    stamp(a, 13)
    dump_stamps(a, 14, 100, 'k3')
    a.label('L_k3_end')
    a('s_endpgm')
    return a.text(), 232, NS * 16384
```

```python
from asmlib import *
from k0 import *

def cs(a, dc, ds, idx, sc, tmp):
    a('v_cvt_f32_u32 v%d, v%d' % (tmp, idx))
    a('v_mul_f32 v%d, s%d, v%d' % (tmp, sc, tmp))
    a('v_cos_f32 v%d, v%d' % (dc, tmp))
    a('v_sin_f32 v%d, v%d' % (ds, tmp))

SF_ZT, SF_YT, SF_WT = 52, 56, 60
S_F0, S_LB, S_T, S_T2, S_I64, S_I32, S_I2K = 64, 65, 66, 67, 68, 69, 70
S_SA, S_SB = 71, 72
WPB = [224, 240]
NR = 4

def fft_wg(a, sw, sq):
    a('v_and_b32 v6, 15, v0')
    a('v_bfe_u32 v1, v0, 6, 2')
    a('v_lshl_add_u32 v4, v1, 4, v6')
    a('v_bfe_u32 v5, v0, 4, 2')
    a('v_and_b32 v2, 255, v0')
    a('v_bfe_u32 v3, v0, 5, 1')
    a('v_lshlrev_b32 v3, 1, v3')
    a('v_xor_b32 v2, v2, v3')
    a('v_lshlrev_b32 v2, 4, v2')
    a('s_lshr_b32 s%d, s%d, 2' % (S_T, sw))
    a('s_lshl_b32 s%d, s%d, 1' % (S_F0, sq))
    a('s_add_u32 s%d, s%d, s%d' % (S_F0, S_F0, S_T))
    a('s_mul_i32 s%d, s%d, 69632' % (S_LB, S_T))
    a('s_and_b32 s%d, s%d, 3' % (S_T2, sw))
    a('s_lshl_b32 s%d, s%d, 10' % (S_T2, S_T2))
    a('s_add_u32 s%d, s%d, s%d' % (S_T2, S_T2, S_LB))
    a.srd(SF_ZT, 34, 35, ZT_BYTES, ZT_OFF)
    a.srd(SF_YT, 34, 35, YT_BYTES, YT_OFF)
    a.srd(SF_WT, 34, 35, WT_BYTES, WT_OFF)
    a('v_lshlrev_b32 v3, 6, v4')
    a('v_lshl_add_u32 v3, v5, 3, v3')
    def issue_z(c):
        a('s_add_u32 s%d, s%d, %d' % (S_SA, S_F0, 64 * c))
        a('s_lshl_b32 s%d, s%d, 13' % (S_SA, S_SA))
        a('s_add_u32 s%d, s%d, %d' % (S_T, S_T2, 8192 * c))
        a('s_mov_b32 m0, s%d' % S_T)
        a('s_add_u32 s%d, s%d, 4096' % (S_SB, S_SA))
        a('buffer_load_dwordx4 v2, s[%d:%d], s%d offen lds' % (SF_ZT, SF_ZT + 3, S_SA))
        a('s_add_u32 s%d, s%d, 4096' % (S_T, S_T))
        a('s_mov_b32 m0, s%d' % S_T)
        a.nop(1)
        a('buffer_load_dwordx4 v2, s[%d:%d], s%d offen lds' % (SF_ZT, SF_ZT + 3, S_SB))
    def issue_w(c):
        WP = WPB[c & 1]
        a('s_add_u32 s%d, s%d, %d' % (S_SA, S_F0, 64 * c))
        a('s_lshl_b32 s%d, s%d, 13' % (S_SA, S_SA))
        a('s_add_u32 s%d, s%d, 4096' % (S_SB, S_SA))
        for pl in range(2):
            for mt in range(2):
                a('buffer_load_dwordx2 %s, v3, s[%d:%d], s%d offen offset:%d' % (vr(WP + 4 * pl + 2 * mt, 2), SF_WT, SF_WT + 3, S_SA + pl, 32 * mt))
    issue_z(0)
    issue_z(1)
    stamp(a, 1)
    WR, WI = 80, 88
    a('s_mov_b32 s%d, 0x%x' % (S_I64, f32bits(1.0 / 64)))
    a('s_mov_b32 s%d, 0x%x' % (S_I32, f32bits(1.0 / 32)))
    a('s_mov_b32 s%d, 0x%x' % (S_I2K, f32bits(1.0 / 2048)))
    C1, S1, NS1 = 16, 24, 32
    C2, S2, NS2 = 40, 48, 56
    TWC, TWS = 64, 72
    T0 = 152
    def rotblk(Cd, Sd, Cs, Ss, P):
        a('v_pk_mul_f32 %s, %s, %s op_sel:[0,0] op_sel_hi:[1,0]' % (vr(Cd, 2), vr(Cs, 2), vr(P, 2)))
        a('v_pk_mul_f32 %s, %s, %s op_sel:[0,0] op_sel_hi:[1,0]' % (vr(Sd, 2), vr(Ss, 2), vr(P, 2)))
        a('v_pk_fma_f32 %s, %s, %s, %s op_sel:[0,1,0] op_sel_hi:[1,1,1] neg_lo:[1,0,0] neg_hi:[1,0,0]' % (vr(Cd, 2), vr(Ss, 2), vr(P, 2), vr(Cd, 2)))
        a('v_pk_fma_f32 %s, %s, %s, %s op_sel:[0,1,0] op_sel_hi:[1,1,1]' % (vr(Sd, 2), vr(Cs, 2), vr(P, 2), vr(Sd, 2)))
    X1C, X1S = 96, 104
    X2C, X2S = 112, 116
    P12, P14, P22, PT2, PT16 = 120, 122, 124, 126, 128
    t = T0
    a('v_lshlrev_b32 v7, 3, v5')
    a('v_mul_u32_u24 v%d, v7, v4' % t)
    a('v_add_u32 v%d, v%d, v4' % (t + 1, t))
    a('v_lshlrev_b32 v%d, 1, v4' % (t + 2))
    a('v_lshlrev_b32 v%d, 2, v4' % (t + 3))
    for e in range(4):
        a('v_and_b32 v%d, 63, v%d' % (t + e, t + e))
    cs(a, X1C, X1S, t, S_I64, t + 4)
    cs(a, X1C + 1, X1S + 1, t + 1, S_I64, t + 5)
    cs(a, P12, P12 + 1, t + 2, S_I64, t + 6)
    cs(a, P14, P14 + 1, t + 3, S_I64, t + 7)
    a('v_lshlrev_b32 v7, 2, v5')
    a('v_mul_u32_u24 v%d, v7, v6' % t)
    a('v_add_u32 v%d, v%d, v6' % (t + 1, t))
    a('v_lshlrev_b32 v%d, 1, v6' % (t + 2))
    for e in range(3):
        a('v_and_b32 v%d, 31, v%d' % (t + e, t + e))
    cs(a, X2C, X2S, t, S_I32, t + 4)
    cs(a, X2C + 1, X2S + 1, t + 1, S_I32, t + 5)
    cs(a, P22, P22 + 1, t + 2, S_I32, t + 6)
    a('v_mul_u32_u24 v%d, v7, v4' % t)
    a('v_add_u32 v%d, v%d, v4' % (t + 1, t))
    a('v_lshlrev_b32 v%d, 1, v4' % (t + 2))
    a('v_lshlrev_b32 v%d, 4, v4' % (t + 3))
    cs(a, TWC, TWS, t, S_I2K, t + 4)
    cs(a, TWC + 1, TWS + 1, t + 1, S_I2K, t + 5)
    cs(a, PT2, PT2 + 1, t + 2, S_I2K, t + 6)
    cs(a, PT16, PT16 + 1, t + 3, S_I2K, t + 7)
    a('v_and_b32 v8, 1, v0')
    a('v_mul_u32_u24 v8, 0x8000, v8')
    a('v_lshl_or_b32 v8, v8, 16, v8')
    rotblk(X1C + 2, X1S + 2, X1C, X1S, P12)
    rotblk(X2C + 2, X2S + 2, X2C, X2S, P22)
    rotblk(TWC + 2, TWS + 2, TWC, TWS, PT2)
    rotblk(X1C + 4, X1S + 4, X1C, X1S, P14)
    rotblk(X1C + 6, X1S + 6, X1C + 2, X1S + 2, P14)
    rotblk(TWC + 4, TWS + 4, TWC, TWS, PT16)
    rotblk(TWC + 6, TWS + 6, TWC + 2, TWS + 2, PT16)
    for q in range(4):
        a('v_cvt_pk_bf16_f32 v%d, v%d, v%d' % (C1 + q, X1C + 2 * q, X1C + 2 * q + 1))
        a('v_cvt_pk_bf16_f32 v%d, v%d, v%d' % (S1 + q, X1S + 2 * q, X1S + 2 * q + 1))
        a('v_cvt_pk_bf16_f32 v%d, -v%d, -v%d' % (NS1 + q, X1S + 2 * q, X1S + 2 * q + 1))
    for T in (C1, S1, NS1):
        for q in range(4):
            a('v_xor_b32 v%d, v8, v%d' % (T + 4 + q, T + q))
    for q in range(2):
        a('v_cvt_pk_bf16_f32 v%d, v%d, v%d' % (C2 + q, X2C + 2 * q, X2C + 2 * q + 1))
        a('v_cvt_pk_bf16_f32 v%d, v%d, v%d' % (S2 + q, X2S + 2 * q, X2S + 2 * q + 1))
        a('v_cvt_pk_bf16_f32 v%d, -v%d, -v%d' % (NS2 + q, X2S + 2 * q, X2S + 2 * q + 1))
    for T in (C2, S2, NS2):
        for q in range(2):
            a('v_xor_b32 v%d, v8, v%d' % (T + 2 + q, T + q))
        for q in range(4):
            a('v_xor_b32 v%d, 0x80000000, v%d' % (T + 4 + q, T + q))
    a('v_lshrrev_b32 v8, 2, v6')
    a('v_and_b32 v9, 3, v6')
    a('v_lshl_add_u32 v8, v5, 3, v8')
    a('v_mul_u32_u24 v11, 72, v8')
    a('v_lshl_add_u32 v11, v9, 4, v11')
    a('v_add_u32 v11, s%d, v11' % S_LB)
    a('v_add_u32 v11, 32768, v11')
    a('v_lshlrev_b32 v8, 6, v8')
    a('v_add_u32 v8, s%d, v8' % S_LB)
    a('v_lshl_add_u32 v10, v9, 3, v8')
    a('v_and_b32 v9, 1, v5')
    a('v_lshl_add_u32 v10, v9, 5, v10')
    a('v_xor_b32 v14, 32, v10')
    a('v_lshlrev_b32 v12, 6, v4')
    a('v_lshl_add_u32 v13, v5, 4, v12')
    a('v_mul_u32_u24 v12, 72, v4')
    a('v_lshl_add_u32 v12, v5, 3, v12')
    a('v_add_u32 v12, s%d, v12' % S_LB)
    a('v_add_u32 v12, 32768, v12')
    def mf(d, x, y, z=False):
        a('v_mfma_f32_16x16x32_bf16 %s, %s, %s, %s' % (vr(d, 4), vr(x, 4), vr(y, 4), '0' if z else vr(d, 4)))
    NEG = ' neg_lo:[1,0,0] neg_hi:[1,0,0]'
    class Col:
        def __init__(self, c):
            self.c = c
            b = 80 + 72 * (c & 1)
            self.ZR, self.ZI, self.ACC, self.T0, self.BR, self.BI = b, b + 16, b + 32, b + 48, b + 64, b + 68
            self.WP = WPB[c & 1]
        def TR(self, mt): return self.ACC + 4 * mt
        def TI(self, mt): return self.ACC + 8 + 4 * mt
        def reads(self, base, mtstep):
            for pl, Z in ((0, self.ZR), (1, self.ZI)):
                for mt in range(2):
                    for ks in range(2):
                        for h in range(2):
                            d = Z + 8 * mt + 4 * ks + 2 * h
                            if base == 10:
                                a('ds_read_b64_tr_b16 %s, v%d offset:%d' % (vr(d, 2), 14 if mt else 10, 8192 * self.c + pl * 4096 + ks * 2048 + h * 256))
                            else:
                                a('ds_read_b64_tr_b16 %s, v%d offset:%d' % (vr(d, 2), base, 9216 * self.c + pl * 4608 + ks * 2304 + h * 288 + mt * 8))
        def big(self, inv):
            Sa, Sb = (NS1, S1) if inv else (S1, NS1)
            for mt in range(2):
                for ks in range(2):
                    zr, zi = self.ZR + 8 * mt + 4 * ks, self.ZI + 8 * mt + 4 * ks
                    mf(self.TR(mt), zr, C1 + 4 * ks, ks == 0)
                    mf(self.TI(mt), zi, C1 + 4 * ks, ks == 0)
                    mf(self.TR(mt), zi, Sa + 4 * ks)
                    mf(self.TI(mt), zr, Sb + 4 * ks)
        def small(self, inv):
            Sa, Sb = (NS2, S2) if inv else (S2, NS2)
            a.nop(2)
            for mt in range(2):
                mf(self.TR(mt), C2 + 4 * mt, self.BR, True)
                mf(self.TI(mt), C2 + 4 * mt, self.BI, True)
                mf(self.TR(mt), Sa + 4 * mt, self.BI)
                mf(self.TI(mt), Sb + 4 * mt, self.BR)
        def pack(self):
            T = self.T0
            for q in range(4):
                a('v_cvt_pk_bf16_f32 v%d, v%d, v%d' % (self.BR + q, T + 2 * q, T + 2 * q + 1))
                a('v_cvt_pk_bf16_f32 v%d, v%d, v%d' % (self.BI + q, T + 8 + 2 * q, T + 8 + 2 * q + 1))
        def twiddle(self, conj):
            T = self.T0
            for i in range(8):
                tr_, ti_ = self.ACC + i, self.ACC + 8 + i
                a('v_mul_f32 v%d, v%d, v%d' % (T + i, tr_, TWC + i))
                a('v_mul_f32 v%d, v%d, v%d' % (T + 8 + i, ti_, TWC + i))
                if not conj:
                    a('v_fmac_f32 v%d, v%d, v%d' % (T + i, ti_, TWS + i))
                    a('v_fma_f32 v%d, -v%d, v%d, v%d' % (T + 8 + i, tr_, TWS + i, T + 8 + i))
                else:
                    a('v_fma_f32 v%d, -v%d, v%d, v%d' % (T + i, ti_, TWS + i, T + i))
                    a('v_fmac_f32 v%d, v%d, v%d' % (T + 8 + i, tr_, TWS + i))
            self.pack()
        def wmul(self):
            T = self.T0
            WR, WI = self.ZR, self.ZR + 8
            for i in range(16):
                src = self.WP + (i >> 1)
                if i & 1:
                    a('v_and_b32 v%d, 0xffff0000, v%d' % (WR + i, src))
                else:
                    a('v_lshlrev_b32 v%d, 16, v%d' % (WR + i, src))
            for i in range(8):
                xr, xi = self.ACC + i, self.ACC + 8 + i
                a('v_mul_f32 v%d, v%d, v%d' % (T + i, xr, WR + i))
                a('v_mul_f32 v%d, v%d, v%d' % (T + 8 + i, xr, WI + i))
                a('v_fma_f32 v%d, -v%d, v%d, v%d' % (T + i, xi, WI + i, T + i))
                a('v_fmac_f32 v%d, v%d, v%d' % (T + 8 + i, xi, WR + i))
            self.pack()
        def t2write(self):
            for mt in range(2):
                a('ds_write_b64 v12, %s offset:%d' % (vr(self.BR + 2 * mt, 2), 9216 * self.c + 32 * mt))
                a('ds_write_b64 v12, %s offset:%d' % (vr(self.BI + 2 * mt, 2), 9216 * self.c + 4608 + 32 * mt))
        def out(self):
            c = self.c
            a('s_add_u32 s%d, s%d, %d' % (S_T, S_F0, 64 * c))
            a('s_mul_i32 s%d, s%d, %d' % (S_SA, S_T, 2 * YP))
            a('s_add_u32 s%d, s%d, %d' % (S_SB, S_SA, YP))
            if c == 0:
                a('s_cmp_eq_u32 s%d, 0' % S_T)
                a('s_cselect_b32 s%d, 0x7ff00000, s%d' % (S_SB, S_SB))
            if c == 3:
                a('s_cmp_eq_u32 s%d, 224' % S_T)
                a('s_cselect_b32 s%d, %d, s%d' % (S_SA, YP, S_SA))
                a('s_cselect_b32 s%d, 0x7ff00000, s%d' % (S_SB, S_SB))
            for q in range(4):
                a('v_cvt_pk_bf16_f32 v%d, v%d, v%d' % (self.BR + q, self.ACC + 2 * q, self.ACC + 2 * q + 1))
                a('v_cvt_pk_bf16_f32 v%d, v%d, v%d' % (self.BI + q, self.ACC + 8 + 2 * q, self.ACC + 8 + 2 * q + 1))
            a('buffer_store_dwordx4 %s, v13, s[%d:%d], s%d offen' % (vr(self.BR, 4), SF_YT, SF_YT + 3, S_SA))
            a('buffer_store_dwordx4 %s, v13, s[%d:%d], s%d offen' % (vr(self.BI, 4), SF_YT, SF_YT + 3, S_SB))
    def cap(fn, *args):
        old = a.lines
        a.lines = []
        fn(*args)
        r = [l for l in a.lines if 's_nop' not in l]
        a.lines = old
        return r
    def mix(mfl, val, step=2):
        out = []
        vi = 0
        for _ in range(2):
            if vi < len(val):
                out.append(val[vi]); vi += 1
            else:
                out.append('    s_nop 0')
        for m in mfl:
            out.append(m)
            for _ in range(step):
                if vi < len(val):
                    out.append(val[vi]); vi += 1
        out += val[vi:]
        a.lines += out
    for p in range(2):
        A, B = Col(2 * p), Col(2 * p + 1)
        if p == 0:
            issue_w(0)
            issue_w(1)
        a('s_waitcnt vmcnt(8)')
        a('s_barrier')
        stamp(a, 2 + 2 * p)
        A.reads(10, 32)
        B.reads(10, 32)
        a('s_waitcnt lgkmcnt(0)')
        A.big(False)
        if p == 0:
            issue_z(2)
        else:
            a.nop(4)
        mix(cap(B.big, False), cap(A.twiddle, False))
        if p == 0:
            issue_z(3)
        mix(cap(A.small, False), cap(B.twiddle, False))
        a('s_waitcnt vmcnt(%d)' % (4 if p == 0 else 0))
        mix(cap(B.small, False), cap(A.wmul))
        mix(cap(A.small, True), cap(B.wmul))
        if p == 0:
            issue_w(2)
            issue_w(3)
        mix(cap(B.small, True), cap(A.twiddle, True))
        A.t2write()
        B.twiddle(True)
        B.t2write()
        stamp(a, 3 + 2 * p)
    a('s_waitcnt lgkmcnt(0)')
    a('s_barrier')
    stamp(a, 6)
    cols = [Col(c) for c in range(4)]
    cols[0].reads(11, 8)
    cols[1].reads(11, 8)
    for p in range(2):
        A, B = cols[2 * p], cols[2 * p + 1]
        a('s_waitcnt lgkmcnt(0)')
        A.big(True)
        a.nop(4)
        mix(cap(B.big, True), ['    s_nop 3'] * 0 + cap(A.out), 1)
        if p == 0:
            cols[2].reads(11, 8)
        a.nop(8)
        B.out()
        if p == 0:
            cols[3].reads(11, 8)
        a.nop(1)
        stamp(a, 7 + p)
    a('s_waitcnt vmcnt(0)') if STAMPS else None
```

```python
from asmlib import *
from k0 import *

def gen_k0():
    a = Asm()
    PITCH = 928
    SWG = int(os.environ.get('STAMPWG', '100'))
    inv448 = f32bits(1.0 / 448.0)
    a('s_cmp_ge_u32 s2, 256')
    a('s_cbranch_scc1 L_k0_end')
    stamp(a, 0)
    load_ptrs(a)
    a('v_lshrrev_b32 v1, 6, v0')
    if int(os.environ.get('K0MAP', '1')):
        a('s_and_b32 s3, s2, 7')
        a('s_lshl_b32 s3, s3, 3')
        a('s_lshr_b32 s4, s2, 5')
        a('s_add_u32 s3, s3, s4')
        a('s_bfe_u32 s4, s2, 0x20003')
    else:
        a('s_lshr_b32 s3, s2, 2')
        a('s_and_b32 s4, s2, 3')
    a('v_readfirstlane_b32 s6, v1')
    a('s_mov_b32 s7, 0x%x' % inv448)
    a('v_lshrrev_b32 v1, 4, v0')
    a('v_and_b32 v2, 15, v0')
    a('v_mul_u32_u24 v3, 896, v1')
    a('v_lshl_add_u32 v3, v2, 3, v3')
    a('s_mul_i32 s5, s3, 28672')
    a('s_waitcnt lgkmcnt(0)')
    a.srd(36, 16, 17, XN_BYTES)
    a.srd(40, 34, 35, XN_BYTES, XN_OFF)
    for i in range(7):
        a('buffer_load_dwordx2 %s, v3, s[36:39], s5 offen offset:%d' % (vr(8 + 2 * i, 2), 128 * i))
    a('s_cmp_ge_u32 s6, 4')
    a('s_cbranch_scc1 L_k0_bgen')
    a('s_waitcnt vmcnt(0)')
    a.srd(52, 18, 19, 2048 * 225 * 2)
    a.srd(56, 20, 21, 2048 * 225 * 2)
    a.srd(60, 34, 35, WT_BYTES, WT_OFF)
    a('s_lshl_b32 s8, s4, 3')
    a('s_lshl_b32 s8, s8, 6')
    a('s_add_u32 s8, s8, s3')
    a('s_mul_i32 s8, s8, 450')
    a('v_lshlrev_b32 v36, 1, v0')
    for e in range(8):
        for pl in range(2):
            a('s_add_u32 s9, s8, %d' % (e * 64 * 450))
            a('buffer_load_ushort v%d, v36, s[%d:%d], s9 offen' % (112 + 8 * pl + e, 52 + 4 * pl, 55 + 4 * pl))
    if PREFETCH:
        a('s_lshl_b32 s9, s2, 12')
        a('v_lshl_add_u32 v37, v0, 4, s9')
        a('s_mov_b32 s9, 0x100000')
        PS = [64, 68, 12]
        for m in range(3):
            a.srd(PS[m], 24 + 2 * m, 25 + 2 * m, 448 * 3584)
        for m in (2, 0, 1):
            a('buffer_load_dwordx4 %s, v37, s[%d:%d], 0 offen' % (vr(136 + 4 * m, 4), PS[m], PS[m] + 3))
            a('buffer_load_dwordx4 %s, v37, s[%d:%d], s9 offen' % (vr(148 + 4 * (m & 1), 4), PS[m], PS[m] + 3))
    a('s_branch L_k0_ln')
    a.label('L_k0_bgen')
    CODEPF = int(os.environ.get('CODEPF', '1'))
    if CODEPF:
        a('s_cmp_ge_u32 s2, 16')
        a('s_cbranch_scc1 L_k0_nopf')
        a('s_getpc_b64 s[96:97]')
        a.label('L_k0_pc')
        a('s_mov_b32 s98, k1_kernel-L_k0_pc')
        a('s_mov_b32 s99, L_k3_end-k1_kernel-4')
        a('s_cmp_lt_u32 s2, 8')
        a('s_cselect_b32 s98, k0_kernel-L_k0_pc, s98')
        a('s_cselect_b32 s99, L_k0_end-k0_kernel-4, s99')
        a('s_ashr_i32 s100, s98, 31')
        a('s_add_u32 s96, s96, s98')
        a('s_addc_u32 s97, s97, s100')
        a('v_and_b32 v98, 255, v0')
        a('v_lshlrev_b32 v98, 7, v98')
        a('v_min_u32 v98, s99, v98')
        a('global_load_dword v99, v98, s[96:97]')
        a.label('L_k0_nopf')
    a('v_and_b32 v4, 15, v0')
    a('v_bfe_u32 v5, v0, 6, 2')
    a('v_lshl_add_u32 v4, v5, 4, v4')
    a('s_lshl_b32 s8, s4, 6')
    a('v_add_u32 v4, s8, v4')
    a('v_bfe_u32 v5, v0, 4, 2')
    a('v_lshlrev_b32 v5, 3, v5')
    BF = 100
    CA, SA, CB, SB = 40, 48, 56, 64
    P2, P4, P32 = 72, 74, 76
    def evalcs(dc, ds, t):
        mod448(a, t, t + 1, t + 2)
        a('v_cvt_f32_u32 v%d, v%d' % (t + 2, t + 2))
        a('v_mul_f32 v%d, s7, v%d' % (t + 2, t + 2))
        a('v_cos_f32 v%d, v%d' % (dc, t + 2))
        a('v_sin_f32 v%d, v%d' % (ds, t + 2))
    a('v_mul_u32_u24 v80, v5, v4')
    a('v_add_u32 v83, v80, v4')
    a('v_lshlrev_b32 v86, 1, v4')
    a('v_lshlrev_b32 v89, 2, v4')
    a('v_lshlrev_b32 v92, 5, v4')
    evalcs(CA, SA, 80)
    evalcs(CA + 1, SA + 1, 83)
    evalcs(P2, P2 + 1, 86)
    evalcs(P4, P4 + 1, 89)
    evalcs(P32, P32 + 1, 92)
    a.nop(1)
    def rotblk(Cd, Sd, Cs, Ss, P):
        a('v_pk_mul_f32 %s, %s, %s op_sel:[0,0] op_sel_hi:[1,0]' % (vr(Cd, 2), vr(Cs, 2), vr(P, 2)))
        a('v_pk_mul_f32 %s, %s, %s op_sel:[0,0] op_sel_hi:[1,0]' % (vr(Sd, 2), vr(Ss, 2), vr(P, 2)))
        a('v_pk_fma_f32 %s, %s, %s, %s op_sel:[0,1,0] op_sel_hi:[1,1,1] neg_lo:[1,0,0] neg_hi:[1,0,0]' % (vr(Cd, 2), vr(Ss, 2), vr(P, 2), vr(Cd, 2)))
        a('v_pk_fma_f32 %s, %s, %s, %s op_sel:[0,1,0] op_sel_hi:[1,1,1]' % (vr(Sd, 2), vr(Cs, 2), vr(P, 2), vr(Sd, 2)))
    rotblk(CA + 2, SA + 2, CA, SA, P2)
    rotblk(CA + 4, SA + 4, CA, SA, P4)
    rotblk(CA + 6, SA + 6, CA + 2, SA + 2, P4)
    bufs = [(CA, SA), (CB, SB)]
    for t in range(14):
        C0, S0 = bufs[t & 1]
        C1, S1 = bufs[(t + 1) & 1]
        if t + 1 < 14:
            for q in range(4):
                rotblk(C1 + 2 * q, S1 + 2 * q, C0 + 2 * q, S0 + 2 * q, P32)
        for q in range(4):
            a('v_cvt_pk_bf16_f32 v%d, v%d, v%d' % (BF + 8 * t + q, C0 + 2 * q, C0 + 2 * q + 1))
            a('v_cvt_pk_bf16_f32 v%d, -v%d, -v%d' % (BF + 8 * t + 4 + q, S0 + 2 * q, S0 + 2 * q + 1))
    a('v_and_b32 v36, 15, v0')
    a('v_lshrrev_b32 v37, 2, v36')
    a('v_and_b32 v36, 3, v36')
    a('v_lshl_add_u32 v36, v37, 3, v36')
    a('v_mul_u32_u24 v36, %d, v36' % PITCH)
    a('v_lshl_add_u32 v36, v5, 1, v36')
    a('v_lshlrev_b32 v37, 13, v4')
    a('v_lshl_add_u32 v37, v5, 1, v37')
    a('v_add_u32 v38, 4096, v37')
    a.srd(44, 34, 35, ZT_BYTES, ZT_OFF)
    if CODEPF:
        a('s_cmp_lt_u32 s2, 16')
        a('s_cbranch_scc1 L_k0_w1')
        a('s_waitcnt vmcnt(0)')
        a.label('L_k0_w1')
        a('s_waitcnt vmcnt(1)')
    else:
        a('s_waitcnt vmcnt(0)')
    a.label('L_k0_ln')
    stamp(a, 3)
    F0 = 40
    for i in range(14):
        a('v_lshlrev_b32 v%d, 16, v%d' % (F0 + 2 * i, 8 + i))
        a('v_and_b32 v%d, 0xffff0000, v%d' % (F0 + 2 * i + 1, 8 + i))
    a('v_pk_add_f32 v[72:73], %s, %s' % (vr(F0, 2), vr(F0 + 4, 2)))
    a('v_pk_add_f32 v[74:75], %s, %s' % (vr(F0 + 2, 2), vr(F0 + 6, 2)))
    for i in range(4, 14):
        acc = 72 + 2 * (i & 1)
        a('v_pk_add_f32 %s, %s, %s' % (vr(acc, 2), vr(acc, 2), vr(F0 + 2 * i, 2)))
    a('v_pk_add_f32 v[72:73], v[72:73], v[74:75]')
    a('v_add_f32 v72, v72, v73')
    def red16(r):
        for ctl in ('quad_perm:[1,0,3,2]', 'quad_perm:[2,3,0,1]', 'row_half_mirror', 'row_mirror'):
            a.nop(2)
            a('v_add_f32_dpp v%d, v%d, v%d %s row_mask:0xf bank_mask:0xf' % (r, r, r, ctl))
    red16(72)
    a('v_mul_f32 v76, s7, v72')
    SUBM = ' op_sel_hi:[1,0] neg_lo:[0,1] neg_hi:[0,1]'
    for i in range(14):
        acc = 72 + 2 * (i & 1)
        t = 80 + 2 * (i & 3)
        a('v_pk_add_f32 %s, %s, v[76:77]%s' % (vr(t, 2), vr(F0 + 2 * i, 2), SUBM))
        if i < 2:
            a('v_pk_mul_f32 %s, %s, %s' % (vr(acc, 2), vr(t, 2), vr(t, 2)))
        else:
            a('v_pk_fma_f32 %s, %s, %s, %s' % (vr(acc, 2), vr(t, 2), vr(t, 2), vr(acc, 2)))
    a('v_pk_add_f32 v[72:73], v[72:73], v[74:75]')
    a('v_add_f32 v72, v72, v73')
    red16(72)
    a('v_mul_f32 v72, s7, v72')
    a('v_cvt_pk_bf16_f32 v74, v76, v72')
    a('v_lshlrev_b32 v76, 16, v74')
    a('v_and_b32 v72, 0xffff0000, v74')
    a('v_add_f32 v72, 0x%x, v72' % f32bits(1e-5))
    a('v_cvt_pk_bf16_f32 v72, v72, v72')
    a('v_lshlrev_b32 v72, 16, v72')
    a('v_sqrt_f32 v72, v72')
    a.nop(1)
    a('v_cvt_pk_bf16_f32 v72, v72, v72')
    a('v_lshlrev_b32 v72, 16, v72')
    a('v_rcp_f32 v78, v72')
    a.nop(1)
    for i in range(14):
        x0 = F0 + 2 * i
        a('v_pk_add_f32 %s, %s, v[76:77]%s' % (vr(x0, 2), vr(x0, 2), SUBM))
        a('v_cvt_pk_bf16_f32 v75, v%d, v%d' % (x0, x0 + 1))
        a('v_lshlrev_b32 v%d, 16, v75' % x0)
        a('v_and_b32 v%d, 0xffff0000, v75' % (x0 + 1))
        a('v_pk_mul_f32 %s, %s, v[78:79] op_sel_hi:[1,0]' % (vr(x0, 2), vr(x0, 2)))
        a('v_cvt_pk_bf16_f32 v%d, v%d, v%d' % (8 + i, x0, x0 + 1))
    a('v_mul_u32_u24 v74, %d, v1' % PITCH)
    a('v_lshl_add_u32 v74, v2, 3, v74')
    for i in range(7):
        a('ds_write_b64 v74, %s offset:%d' % (vr(8 + 2 * i, 2), 128 * i))
    a('s_waitcnt lgkmcnt(0)')
    stamp(a, 4)
    a('s_barrier')
    def xn_store(lbl):
        a('s_cmp_lg_u32 s4, 0')
        a('s_cbranch_scc1 L_k0_noxn%s' % lbl)
        for i in range(7):
            a('buffer_store_dwordx2 %s, v3, s[40:43], s5 offen offset:%d' % (vr(8 + 2 * i, 2), 128 * i))
        a.label('L_k0_noxn%s' % lbl)
    a('s_cmp_ge_u32 s6, 4')
    a('s_cbranch_scc1 L_k0_mfma')
    a('s_waitcnt vmcnt(%d)' % (6 if PREFETCH else 0))
    a('v_cmp_gt_u32 vcc, 225, v0')
    a('s_and_saveexec_b64 s[10:11], vcc')
    a('s_cbranch_execz L_k0_wt_restore')
    a('v_lshlrev_b32 v36, 13, v0')
    for pl in range(2):
        for q in range(4):
            a('v_lshl_or_b32 v%d, v%d, 16, v%d' % (128 + 4 * pl + q, 112 + 8 * pl + 2 * q + 1, 112 + 8 * pl + 2 * q))
    a('s_lshl_b32 s8, s3, 6')
    a('s_lshl_b32 s9, s4, 4')
    a('s_add_u32 s8, s8, s9')
    a('s_add_u32 s9, s8, 4096')
    a('buffer_store_dwordx4 v[128:131], v36, s[60:63], s8 offen')
    a('buffer_store_dwordx4 v[132:135], v36, s[60:63], s9 offen')
    a.label('L_k0_wt_restore')
    a('s_mov_b64 exec, s[10:11]')
    xn_store('a')
    stamp(a, 5)
    if os.environ.get('WAVEST0'): dump_wave_stamps(a, [0, 3, 4, 5], SWG, 'k0a')
    a('s_endpgm')
    a.label('L_k0_mfma')
    ACC = 80
    a('s_lshl_b32 s6, s3, 6')
    AF = [40, 48, 56]
    def rd(t):
        buf = AF[t % 3]
        a('ds_read_b128 %s, v36 offset:%d' % (vr(buf, 4), 64 * t))
        a('ds_read_b128 %s, v36 offset:%d' % (vr(buf + 4, 4), 64 * t + 4 * PITCH))
    rd(0)
    rd(1)
    for t in range(14):
        cur = AF[t % 3]
        if t + 2 < 14:
            rd(t + 2)
            a('s_waitcnt lgkmcnt(4)')
        elif t + 1 < 14:
            a('s_waitcnt lgkmcnt(2)')
        else:
            a('s_waitcnt lgkmcnt(0)')
        for mt in range(2):
            for c in range(2):
                d = ACC + 8 * mt + 4 * c
                a('v_mfma_f32_16x16x32_bf16 %s, %s, %s, %s' % (vr(d, 4), vr(cur + 4 * mt, 4), vr(BF + 8 * t + 4 * c, 4), '0' if t == 0 else vr(d, 4)))
    a.nop(10)
    for c in range(2):
        o = 64 + 4 * c
        for mt in range(2):
            d = ACC + 8 * mt + 4 * c
            a('v_cvt_pk_bf16_f32 v%d, v%d, v%d' % (o + 2 * mt, d, d + 1))
            a('v_cvt_pk_bf16_f32 v%d, v%d, v%d' % (o + 2 * mt + 1, d + 2, d + 3))
        a('buffer_store_dwordx4 %s, v%d, s[44:47], s6 offen' % (vr(o, 4), 37 + c))
    xn_store('b')
    a('s_waitcnt vmcnt(0)') if STAMPS else None
    stamp(a, 5)
    if os.environ.get('WAVEST0'): dump_wave_stamps(a, [0, 3, 4, 5], SWG, 'k0b')
    if os.environ.get('ALLWG'):
        a('v_cmp_eq_u32 vcc, 256, v0')
        a('s_and_saveexec_b64 s[62:63], vcc')
        a.srd(40, 34, 35, 1 << 20, 32 << 20)
        a('s_lshl_b32 s8, s2, 5')
        a('v_mov_b32 v1, s8')
        for k, i in enumerate([0, 3, 4, 5]):
            a('v_mov_b32 v2, s%d' % (74 + 2 * i))
            a('v_mov_b32 v3, s%d' % (75 + 2 * i))
            a('buffer_store_dwordx2 v[2:3], v1, s[40:43], 0 offen offset:%d' % (8 * k))
            a.nop(2)
    a.label('L_k0_end')
    a('s_endpgm')
    return a.text(), 212, 32 * PITCH
```

```python
from asmlib import *

import os
PREFETCH = int(os.environ.get('PREFETCH', '1'))
WSB = int(os.environ.get('WSB', '0')) << 20
XN_OFF = WSB
ZT_OFF = WSB + (2 << 20)
YT_OFF = WSB + (4 << 20)
G_OFF = WSB + (6 << 20)
H_OFF = WSB + (8 << 20)
XN_BYTES = 2048 * 448 * 2
ZT_BYTES = 256 * 2 * 2048 * 2
HP = int(os.environ.get('HP', '3712'))
YP = int(os.environ.get('YP', '4224'))
YT_BYTES = 450 * YP
G_ROWS = 480
G_BYTES = G_ROWS * 896
H_BYTES = 2048 * HP
WT_OFF = WSB + (16 << 20)
WT_BYTES = 225 * 2 * 4096

def load_ptrs(a):
    a('s_load_dwordx16 s[16:31], s[0:1], 0')
    a('s_load_dwordx4 s[32:35], s[0:1], 64')

def mod448(a, p, t1, out):
    a('v_lshrrev_b32 v%d, 6, v%d' % (t1, p))
    a('v_mul_u32_u24 v%d, 9363, v%d' % (t1, t1))
    a('v_lshrrev_b32 v%d, 16, v%d' % (t1, t1))
    a('v_mul_u32_u24 v%d, 448, v%d' % (t1, t1))
    a('v_sub_u32 v%d, v%d, v%d' % (out, p, t1))

def gen_k0():
    a = Asm()
    PITCH = 928
    a('s_cmp_ge_u32 s2, 256')
    a('s_cbranch_scc1 L_k0_end')
    stamp(a, 0)
    load_ptrs(a)
    a('s_lshr_b32 s3, s2, 2')
    a('s_and_b32 s4, s2, 3')
    a('v_lshrrev_b32 v1, 3, v0')
    a('v_and_b32 v2, 7, v0')
    a('v_mul_u32_u24 v3, 896, v1')
    a('v_lshl_add_u32 v3, v2, 4, v3')
    a('s_mul_i32 s5, s3, 28672')
    a('s_waitcnt lgkmcnt(0)')
    a.srd(36, 16, 17, XN_BYTES)
    a.srd(40, 34, 35, XN_BYTES, XN_OFF)
    a.srd(44, 34, 35, ZT_BYTES, ZT_OFF)
    a.srd(48, 34, 35, G_BYTES, G_OFF)
    for i in range(7):
        a('buffer_load_dwordx4 %s, v3, s[36:39], s5 offen offset:%d' % (vr(8 + 4 * i, 4), 128 * i))
    a.srd(52, 18, 19, 2048 * 225 * 2)
    a.srd(56, 20, 21, 2048 * 225 * 2)
    a.srd(60, 34, 35, WT_BYTES, WT_OFF)
    a('s_lshl_b32 s8, s4, 3')
    a('s_lshl_b32 s8, s8, 6')
    a('s_add_u32 s8, s8, s3')
    a('s_mul_i32 s8, s8, 450')
    a('v_lshlrev_b32 v36, 1, v0')
    for e in range(8):
        for pl in range(2):
            a('s_add_u32 s9, s8, %d' % (e * 64 * 450))
            a('buffer_load_ushort v%d, v36, s[%d:%d], s9 offen' % (212 + 8 * pl + e, 52 + 4 * pl, 55 + 4 * pl))
    if PREFETCH:
        a('s_lshl_b32 s9, s2, 12')
        a('v_lshl_add_u32 v37, v0, 4, s9')
        a('s_mov_b32 s9, 0x100000')
        PS = [64, 68, 12]
        for m in range(3):
            a.srd(PS[m], 24 + 2 * m, 25 + 2 * m, 448 * 3584)
        for m in (2, 0, 1):
            a('buffer_load_dwordx4 %s, v37, s[%d:%d], 0 offen' % (vr(236 + 4 * m, 4), PS[m], PS[m] + 3))
            a('buffer_load_dwordx4 %s, v37, s[%d:%d], s9 offen' % (vr(248 + 4 * (m & 1), 4), PS[m], PS[m] + 3))
    a('v_and_b32 v4, 15, v0')
    a('v_lshrrev_b32 v5, 6, v0')
    a('v_lshl_add_u32 v4, v5, 4, v4')
    a('s_lshl_b32 s6, s4, 6')
    a('v_add_u32 v4, s6, v4')
    a('v_bfe_u32 v5, v0, 4, 2')
    a('v_lshlrev_b32 v5, 3, v5')
    inv448 = f32bits(1.0 / 448.0)
    a('s_mov_b32 s7, 0x%x' % inv448)
    a('v_cvt_f32_u32 v6, v4')
    a('v_mul_f32 v6, s7, v6')
    a('v_sin_f32 v7, v6')
    a('v_cos_f32 v6, v6')
    BF = 100
    C0, S0 = 44, 52
    for t in range(14):
        a('v_add_u32 v40, %d, v5' % (32 * t))
        a('v_mul_u32_u24 v41, v40, v4')
        mod448(a, 41, 42, 43)
        a('v_cvt_f32_u32 v43, v43')
        a('v_mul_f32 v43, s7, v43')
        a('v_cos_f32 v%d, v43' % C0)
        a('v_sin_f32 v%d, v43' % S0)
        a.nop(1)
        for j in range(7):
            a('v_mul_f32 v40, v%d, v7' % (S0 + j))
            a('v_mul_f32 v41, v%d, v7' % (C0 + j))
            a('v_fma_f32 v%d, v%d, v6, -v40' % (C0 + j + 1, C0 + j))
            a('v_fma_f32 v%d, v%d, v6, v41' % (S0 + j + 1, S0 + j))
        for q in range(4):
            a('v_cvt_pk_bf16_f32 v%d, v%d, v%d' % (BF + 8 * t + q, C0 + 2 * q, C0 + 2 * q + 1))
            a('v_cvt_pk_bf16_f32 v%d, -v%d, -v%d' % (BF + 8 * t + 4 + q, S0 + 2 * q, S0 + 2 * q + 1))
    stamp(a, 1)
    a('s_cmp_ge_u32 s2, 224')
    a('s_cbranch_scc1 L_k0_nog')
    a('s_mov_b32 s8, 0x%x' % f32bits(2.0 / 448.0 / 2048.0))
    a('s_cmp_eq_u32 s2, 0')
    a('s_cselect_b32 s8, 0x%x, s8' % f32bits(1.0 / 448.0 / 2048.0))
    a('s_cmp_eq_u32 s2, 224')
    a('s_cselect_b32 s8, 0x%x, s8' % f32bits(1.0 / 448.0 / 2048.0))
    a('s_cmp_gt_u32 s2, 224')
    a('s_cselect_b32 s8, 0, s8')
    a('v_cmp_gt_u32 vcc, 224, v0')
    a('s_and_saveexec_b64 s[10:11], vcc')
    a('s_cbranch_execz L_k0_g_restore')
    a('v_cmp_le_u32 vcc, 112, v0')
    a.nop(2)
    a('v_cndmask_b32 v40, 0, 1, vcc')
    a('v_mul_u32_u24 v41, 112, v40')
    a('v_sub_u32 v41, v0, v41')
    a('v_cvt_f32_u32 v42, v40')
    a('v_mul_f32 v42, 0.25, v42')
    a('v_mov_b32 v47, s2')
    a('s_cmp_lg_u32 s2, 0')
    a('s_cbranch_scc1 L_k0_g_f')
    a('v_mul_u32_u24 v47, 224, v40')
    a('v_mov_b32 v42, 0')
    a.label('L_k0_g_f')
    a('v_lshlrev_b32 v43, 2, v41')
    for e in range(4):
        a('v_add_u32 v44, %d, v43' % e)
        a('v_mul_u32_u24 v44, v47, v44')
        mod448(a, 44, 45, 46)
        a('v_cvt_f32_u32 v46, v46')
        a('v_fma_f32 v46, v46, s7, v42')
        a('v_cos_f32 v%d, v46' % (48 + e))
        a.nop(1)
        a('v_mul_f32 v%d, s8, v%d' % (48 + e, 48 + e))
    a('v_cvt_pk_bf16_f32 v52, v48, v49')
    a('v_cvt_pk_bf16_f32 v53, v50, v51')
    a('s_lshl_b32 s9, s2, 1')
    a('v_add_u32 v44, s9, v40')
    a('v_mul_u32_u24 v44, 896, v44')
    a('v_lshl_add_u32 v44, v41, 3, v44')
    a('buffer_store_dwordx2 v[52:53], v44, s[48:51], 0 offen')
    a.label('L_k0_g_restore')
    a('s_mov_b64 exec, s[10:11]')
    a.label('L_k0_nog')
    stamp(a, 2)
    F0 = 40
    a('s_waitcnt vmcnt(%d)' % (6 if PREFETCH else 0))
    stamp(a, 3)
    a('v_cmp_gt_u32 vcc, 225, v0')
    a('s_and_saveexec_b64 s[10:11], vcc')
    a('s_cbranch_execz L_k0_wt_restore')
    a('v_lshlrev_b32 v36, 13, v0')
    for pl in range(2):
        for q in range(4):
            a('v_lshl_or_b32 v%d, v%d, 16, v%d' % (228 + 4 * pl + q, 212 + 8 * pl + 2 * q + 1, 212 + 8 * pl + 2 * q))
    a('s_lshl_b32 s8, s3, 6')
    a('s_lshl_b32 s9, s4, 4')
    a('s_add_u32 s8, s8, s9')
    a('s_add_u32 s9, s8, 4096')
    a('buffer_store_dwordx4 v[228:231], v36, s[60:63], s8 offen')
    a('buffer_store_dwordx4 v[232:235], v36, s[60:63], s9 offen')
    a.label('L_k0_wt_restore')
    a('s_mov_b64 exec, s[10:11]')
    for i in range(28):
        a('v_lshlrev_b32 v%d, 16, v%d' % (F0 + 2 * i, 8 + i))
        a('v_and_b32 v%d, 0xffff0000, v%d' % (F0 + 2 * i + 1, 8 + i))
    for k in range(4):
        a('v_add_f32 v%d, v%d, v%d' % (96 + k, F0 + k, F0 + 4 + k))
    for i in range(8, 56):
        a('v_add_f32 v%d, v%d, v%d' % (96 + (i & 3), 96 + (i & 3), F0 + i))
    a('v_add_f32 v96, v96, v97')
    a('v_add_f32 v98, v98, v99')
    a('v_add_f32 v96, v96, v98')
    def red8(r):
        a.nop(2)
        a('v_add_f32_dpp v%d, v%d, v%d quad_perm:[1,0,3,2] row_mask:0xf bank_mask:0xf' % (r, r, r))
        a.nop(2)
        a('v_add_f32_dpp v%d, v%d, v%d quad_perm:[2,3,0,1] row_mask:0xf bank_mask:0xf' % (r, r, r))
        a.nop(2)
        a('v_add_f32_dpp v%d, v%d, v%d row_half_mirror row_mask:0xf bank_mask:0xf' % (r, r, r))
    red8(96)
    a('v_mul_f32 v97, s7, v96')
    a('v_mov_b32 v96, 0')
    a('v_mov_b32 v98, 0')
    for i in range(56):
        acc = 96 if (i & 1) == 0 else 98
        a('v_sub_f32 v99, v%d, v97' % (F0 + i))
        a('v_fmac_f32 v%d, v99, v99' % acc)
    a('v_add_f32 v96, v96, v98')
    red8(96)
    a('v_mul_f32 v96, s7, v96')
    a('v_cvt_pk_bf16_f32 v98, v97, v96')
    a('v_lshlrev_b32 v97, 16, v98')
    a('v_and_b32 v96, 0xffff0000, v98')
    a('v_add_f32 v96, 0x%x, v96' % f32bits(1e-5))
    a('v_cvt_pk_bf16_f32 v96, v96, v96')
    a('v_lshlrev_b32 v96, 16, v96')
    a('v_sqrt_f32 v96, v96')
    a.nop(1)
    a('v_cvt_pk_bf16_f32 v96, v96, v96')
    a('v_lshlrev_b32 v96, 16, v96')
    a('v_rcp_f32 v96, v96')
    a.nop(1)
    for i in range(28):
        x0, x1 = F0 + 2 * i, F0 + 2 * i + 1
        a('v_sub_f32 v%d, v%d, v97' % (x0, x0))
        a('v_sub_f32 v%d, v%d, v97' % (x1, x1))
        a('v_cvt_pk_bf16_f32 v99, v%d, v%d' % (x0, x1))
        a('v_lshlrev_b32 v%d, 16, v99' % x0)
        a('v_and_b32 v%d, 0xffff0000, v99' % x1)
        a('v_mul_f32 v%d, v%d, v96' % (x0, x0))
        a('v_mul_f32 v%d, v%d, v96' % (x1, x1))
        a('v_cvt_pk_bf16_f32 v%d, v%d, v%d' % (8 + i, x0, x1))
    a('v_mul_u32_u24 v98, %d, v1' % PITCH)
    a('v_lshl_add_u32 v98, v2, 4, v98')
    for i in range(7):
        a('ds_write_b128 v98, %s offset:%d' % (vr(8 + 4 * i, 4), 128 * i))
    a('s_cmp_lg_u32 s4, 0')
    a('s_cbranch_scc1 L_k0_noxn')
    for i in range(7):
        a('buffer_store_dwordx4 %s, v3, s[40:43], s5 offen offset:%d' % (vr(8 + 4 * i, 4), 128 * i))
    a.label('L_k0_noxn')
    stamp(a, 4)
    ACC = 60
    for i in range(16):
        a('v_mov_b32 v%d, 0' % (ACC + i))
    a('v_and_b32 v84, 15, v0')
    a('v_lshrrev_b32 v85, 2, v84')
    a('v_and_b32 v84, 3, v84')
    a('v_lshl_add_u32 v84, v85, 3, v84')
    a('v_mul_u32_u24 v84, %d, v84' % PITCH)
    a('v_lshl_add_u32 v84, v5, 1, v84')
    a('s_waitcnt lgkmcnt(0)')
    a('s_barrier')
    stamp(a, 5)
    AF = [76, 88]
    AF = [76, 40]
    def rd(t, buf):
        a('ds_read_b128 %s, v84 offset:%d' % (vr(buf, 4), 64 * t))
        a('ds_read_b128 %s, v84 offset:%d' % (vr(buf + 4, 4), 64 * t + 4 * PITCH))
    rd(0, AF[0])
    for t in range(14):
        cur = AF[t & 1]
        if t + 1 < 14:
            rd(t + 1, AF[(t + 1) & 1])
            a('s_waitcnt lgkmcnt(2)')
        else:
            a('s_waitcnt lgkmcnt(0)')
        for mt in range(2):
            for c in range(2):
                d = ACC + 8 * mt + 4 * c
                a('v_mfma_f32_16x16x32_bf16 %s, %s, %s, %s' % (vr(d, 4), vr(cur + 4 * mt, 4), vr(BF + 8 * t + 4 * c, 4), vr(d, 4)))
    a.nop(10)
    stamp(a, 6)
    a('v_lshlrev_b32 v85, 13, v4')
    a('v_lshl_add_u32 v85, v5, 1, v85')
    a('v_add_u32 v86, 4096, v85')
    a('s_lshl_b32 s6, s3, 6')
    for c in range(2):
        o = 88 + 4 * c
        for mt in range(2):
            d = ACC + 8 * mt + 4 * c
            a('v_cvt_pk_bf16_f32 v%d, v%d, v%d' % (o + 2 * mt, d, d + 1))
            a('v_cvt_pk_bf16_f32 v%d, v%d, v%d' % (o + 2 * mt + 1, d + 2, d + 3))
        a('buffer_store_dwordx4 %s, v%d, s[44:47], s6 offen' % (vr(o, 4), 85 + c))
    a('s_waitcnt vmcnt(0)') if STAMPS else None
    stamp(a, 7)
    dump_stamps(a, 8, 100, 'k0')
    a.label('L_k0_end')
    a('s_endpgm')
    return a.text(), 256, 32 * PITCH
```

```python
from asmlib import *
from k0 import *

def gen_k0():
    a = Asm()
    PITCH = 928
    SWG = int(os.environ.get('STAMPWG', '100'))
    inv448 = f32bits(1.0 / 448.0)
    a('s_cmp_ge_u32 s2, 256')
    a('s_cbranch_scc1 L_k0_end')
    stamp(a, 0)
    load_ptrs(a)
    a('v_lshrrev_b32 v1, 6, v0')
    if int(os.environ.get('K0MAP', '1')):
        a('s_and_b32 s3, s2, 7')
        a('s_lshl_b32 s3, s3, 3')
        a('s_lshr_b32 s4, s2, 5')
        a('s_add_u32 s3, s3, s4')
        a('s_bfe_u32 s4, s2, 0x20003')
    else:
        a('s_lshr_b32 s3, s2, 2')
        a('s_and_b32 s4, s2, 3')
    a('v_readfirstlane_b32 s6, v1')
    a('s_mov_b32 s7, 0x%x' % inv448)
    a('v_lshrrev_b32 v1, 4, v0')
    a('v_and_b32 v2, 15, v0')
    a('v_mul_u32_u24 v3, 896, v1')
    a('v_lshl_add_u32 v3, v2, 3, v3')
    a('s_mul_i32 s5, s3, 28672')
    a('s_waitcnt lgkmcnt(0)')
    a.srd(36, 16, 17, XN_BYTES)
    a.srd(40, 34, 35, XN_BYTES, XN_OFF)
    for i in range(7):
        a('buffer_load_dwordx2 %s, v3, s[36:39], s5 offen offset:%d' % (vr(8 + 2 * i, 2), 128 * i))
    a('s_cmp_ge_u32 s6, 4')
    a('s_cbranch_scc1 L_k0_bgen')
    a('s_waitcnt vmcnt(0)')
    a.srd(52, 18, 19, 2048 * 225 * 2)
    a.srd(56, 20, 21, 2048 * 225 * 2)
    a.srd(60, 34, 35, WT_BYTES, WT_OFF)
    a('s_lshl_b32 s8, s4, 3')
    a('s_lshl_b32 s8, s8, 6')
    a('s_add_u32 s8, s8, s3')
    a('s_mul_i32 s8, s8, 450')
    a('v_lshlrev_b32 v36, 1, v0')
    for e in range(8):
        for pl in range(2):
            a('s_add_u32 s9, s8, %d' % (e * 64 * 450))
            a('buffer_load_ushort v%d, v36, s[%d:%d], s9 offen' % (112 + 8 * pl + e, 52 + 4 * pl, 55 + 4 * pl))
    if PREFETCH:
        a('s_lshl_b32 s9, s2, 12')
        a('v_lshl_add_u32 v37, v0, 4, s9')
        a('s_mov_b32 s9, 0x100000')
        PS = [64, 68, 12]
        for m in range(3):
            a.srd(PS[m], 24 + 2 * m, 25 + 2 * m, 448 * 3584)
        for m in (2, 0, 1):
            a('buffer_load_dwordx4 %s, v37, s[%d:%d], 0 offen' % (vr(136 + 4 * m, 4), PS[m], PS[m] + 3))
            a('buffer_load_dwordx4 %s, v37, s[%d:%d], s9 offen' % (vr(148 + 4 * (m & 1), 4), PS[m], PS[m] + 3))
    a('s_branch L_k0_ln')
    a.label('L_k0_bgen')
    CODEPF = int(os.environ.get('CODEPF', '1'))
    TOUCH = int(os.environ.get('TOUCH', '0'))
    if CODEPF:
        NPF = 24 if TOUCH else 16
        a('s_cmp_ge_u32 s2, %d' % NPF)
        a('s_cbranch_scc1 L_k0_nopf')
        if TOUCH:
            a('s_cmp_lt_u32 s2, 16')
            a('s_cbranch_scc1 L_k0_cpf')
            a('v_and_b32 v96, 63, v0')
            a('v_min_u32 v96, 8, v96')
            a('v_lshlrev_b32 v96, 21, v96')
            a('v_mov_b32 v97, s35')
            a('v_add_co_u32 v96, vcc, s34, v96')
            a('v_addc_co_u32 v97, vcc, 0, v97, vcc')
            for i, sp in enumerate((18, 20, 24, 26, 28, 30)):
                a('v_writelane_b32 v96, s%d, %d' % (sp, 16 + i))
                a('v_writelane_b32 v97, s%d, %d' % (sp + 1, 16 + i))
            a('global_load_dword v99, v[96:97], off')
            a('s_branch L_k0_nopf')
            a.label('L_k0_cpf')
        a('s_getpc_b64 s[96:97]')
        a.label('L_k0_pc')
        a('s_mov_b32 s98, k1_kernel-L_k0_pc')
        a('s_mov_b32 s99, L_k3_end-k1_kernel-4')
        a('s_cmp_lt_u32 s2, 8')
        a('s_cselect_b32 s98, k0_kernel-L_k0_pc, s98')
        a('s_cselect_b32 s99, L_k0_end-k0_kernel-4, s99')
        a('s_ashr_i32 s100, s98, 31')
        a('s_add_u32 s96, s96, s98')
        a('s_addc_u32 s97, s97, s100')
        a('v_and_b32 v98, 255, v0')
        a('v_lshlrev_b32 v98, 7, v98')
        a('v_min_u32 v98, s99, v98')
        a('global_load_dword v99, v98, s[96:97]')
        a.label('L_k0_nopf')
    a('v_and_b32 v4, 15, v0')
    a('v_bfe_u32 v5, v0, 6, 2')
    a('v_lshl_add_u32 v4, v5, 4, v4')
    a('s_lshl_b32 s8, s4, 6')
    a('v_add_u32 v4, s8, v4')
    a('v_bfe_u32 v5, v0, 4, 2')
    a('v_lshlrev_b32 v5, 3, v5')
    BF = 100
    CA, SA, CB, SB = 40, 48, 56, 64
    P2, P4, P32 = 72, 74, 76
    def evalcs(dc, ds, t):
        mod448(a, t, t + 1, t + 2)
        a('v_cvt_f32_u32 v%d, v%d' % (t + 2, t + 2))
        a('v_mul_f32 v%d, s7, v%d' % (t + 2, t + 2))
        a('v_cos_f32 v%d, v%d' % (dc, t + 2))
        a('v_sin_f32 v%d, v%d' % (ds, t + 2))
    a('v_mul_u32_u24 v80, v5, v4')
    a('v_add_u32 v83, v80, v4')
    a('v_lshlrev_b32 v86, 1, v4')
    a('v_lshlrev_b32 v89, 2, v4')
    a('v_lshlrev_b32 v92, 5, v4')
    evalcs(CA, SA, 80)
    evalcs(CA + 1, SA + 1, 83)
    evalcs(P2, P2 + 1, 86)
    evalcs(P4, P4 + 1, 89)
    evalcs(P32, P32 + 1, 92)
    a.nop(1)
    def rotblk(Cd, Sd, Cs, Ss, P):
        a('v_pk_mul_f32 %s, %s, %s op_sel:[0,0] op_sel_hi:[1,0]' % (vr(Cd, 2), vr(Cs, 2), vr(P, 2)))
        a('v_pk_mul_f32 %s, %s, %s op_sel:[0,0] op_sel_hi:[1,0]' % (vr(Sd, 2), vr(Ss, 2), vr(P, 2)))
        a('v_pk_fma_f32 %s, %s, %s, %s op_sel:[0,1,0] op_sel_hi:[1,1,1] neg_lo:[1,0,0] neg_hi:[1,0,0]' % (vr(Cd, 2), vr(Ss, 2), vr(P, 2), vr(Cd, 2)))
        a('v_pk_fma_f32 %s, %s, %s, %s op_sel:[0,1,0] op_sel_hi:[1,1,1]' % (vr(Sd, 2), vr(Cs, 2), vr(P, 2), vr(Sd, 2)))
    rotblk(CA + 2, SA + 2, CA, SA, P2)
    rotblk(CA + 4, SA + 4, CA, SA, P4)
    rotblk(CA + 6, SA + 6, CA + 2, SA + 2, P4)
    bufs = [(CA, SA), (CB, SB)]
    for t in range(14):
        C0, S0 = bufs[t & 1]
        C1, S1 = bufs[(t + 1) & 1]
        if t + 1 < 14:
            for q in range(4):
                rotblk(C1 + 2 * q, S1 + 2 * q, C0 + 2 * q, S0 + 2 * q, P32)
        for q in range(4):
            a('v_cvt_pk_bf16_f32 v%d, v%d, v%d' % (BF + 8 * t + q, C0 + 2 * q, C0 + 2 * q + 1))
            a('v_cvt_pk_bf16_f32 v%d, -v%d, -v%d' % (BF + 8 * t + 4 + q, S0 + 2 * q, S0 + 2 * q + 1))
    a('v_and_b32 v36, 15, v0')
    a('v_lshrrev_b32 v37, 2, v36')
    a('v_and_b32 v36, 3, v36')
    a('v_lshl_add_u32 v36, v37, 3, v36')
    a('v_mul_u32_u24 v36, %d, v36' % PITCH)
    a('v_lshl_add_u32 v36, v5, 1, v36')
    a('v_lshlrev_b32 v37, 13, v4')
    a('v_lshl_add_u32 v37, v5, 1, v37')
    a('v_add_u32 v38, 4096, v37')
    a.srd(44, 34, 35, ZT_BYTES, ZT_OFF)
    if CODEPF:
        a('s_cmp_lt_u32 s2, %d' % NPF)
        a('s_cbranch_scc1 L_k0_w1')
        a('s_waitcnt vmcnt(0)')
        a.label('L_k0_w1')
        a('s_waitcnt vmcnt(1)')
    else:
        a('s_waitcnt vmcnt(0)')
    a.label('L_k0_ln')
    stamp(a, 3)
    F0 = 40
    for i in range(14):
        a('v_lshlrev_b32 v%d, 16, v%d' % (F0 + 2 * i, 8 + i))
        a('v_and_b32 v%d, 0xffff0000, v%d' % (F0 + 2 * i + 1, 8 + i))
    a('v_pk_add_f32 v[72:73], %s, %s' % (vr(F0, 2), vr(F0 + 4, 2)))
    a('v_pk_add_f32 v[74:75], %s, %s' % (vr(F0 + 2, 2), vr(F0 + 6, 2)))
    for i in range(4, 14):
        acc = 72 + 2 * (i & 1)
        a('v_pk_add_f32 %s, %s, %s' % (vr(acc, 2), vr(acc, 2), vr(F0 + 2 * i, 2)))
    a('v_pk_add_f32 v[72:73], v[72:73], v[74:75]')
    a('v_add_f32 v72, v72, v73')
    def red16(r):
        for ctl in ('quad_perm:[1,0,3,2]', 'quad_perm:[2,3,0,1]', 'row_half_mirror', 'row_mirror'):
            a.nop(2)
            a('v_add_f32_dpp v%d, v%d, v%d %s row_mask:0xf bank_mask:0xf' % (r, r, r, ctl))
    red16(72)
    a('v_mul_f32 v76, s7, v72')
    SUBM = ' op_sel_hi:[1,0] neg_lo:[0,1] neg_hi:[0,1]'
    for i in range(14):
        acc = 72 + 2 * (i & 1)
        t = 80 + 2 * (i & 3)
        a('v_pk_add_f32 %s, %s, v[76:77]%s' % (vr(t, 2), vr(F0 + 2 * i, 2), SUBM))
        if i < 2:
            a('v_pk_mul_f32 %s, %s, %s' % (vr(acc, 2), vr(t, 2), vr(t, 2)))
        else:
            a('v_pk_fma_f32 %s, %s, %s, %s' % (vr(acc, 2), vr(t, 2), vr(t, 2), vr(acc, 2)))
    a('v_pk_add_f32 v[72:73], v[72:73], v[74:75]')
    a('v_add_f32 v72, v72, v73')
    red16(72)
    a('v_mul_f32 v72, s7, v72')
    a('v_cvt_pk_bf16_f32 v74, v76, v72')
    a('v_lshlrev_b32 v76, 16, v74')
    a('v_and_b32 v72, 0xffff0000, v74')
    a('v_add_f32 v72, 0x%x, v72' % f32bits(1e-5))
    a('v_cvt_pk_bf16_f32 v72, v72, v72')
    a('v_lshlrev_b32 v72, 16, v72')
    a('v_sqrt_f32 v72, v72')
    a.nop(1)
    a('v_cvt_pk_bf16_f32 v72, v72, v72')
    a('v_lshlrev_b32 v72, 16, v72')
    a('v_rcp_f32 v78, v72')
    a.nop(1)
    for i in range(14):
        x0 = F0 + 2 * i
        a('v_pk_add_f32 %s, %s, v[76:77]%s' % (vr(x0, 2), vr(x0, 2), SUBM))
        a('v_cvt_pk_bf16_f32 v75, v%d, v%d' % (x0, x0 + 1))
        a('v_lshlrev_b32 v%d, 16, v75' % x0)
        a('v_and_b32 v%d, 0xffff0000, v75' % (x0 + 1))
        a('v_pk_mul_f32 %s, %s, v[78:79] op_sel_hi:[1,0]' % (vr(x0, 2), vr(x0, 2)))
        a('v_cvt_pk_bf16_f32 v%d, v%d, v%d' % (8 + i, x0, x0 + 1))
    a('v_mul_u32_u24 v74, %d, v1' % PITCH)
    a('v_lshl_add_u32 v74, v2, 3, v74')
    for i in range(7):
        a('ds_write_b64 v74, %s offset:%d' % (vr(8 + 2 * i, 2), 128 * i))
    a('s_waitcnt lgkmcnt(0)')
    stamp(a, 4)
    a('s_barrier')
    def xn_store(lbl):
        a('s_cmp_lg_u32 s4, 0')
        a('s_cbranch_scc1 L_k0_noxn%s' % lbl)
        for i in range(7):
            a('buffer_store_dwordx2 %s, v3, s[40:43], s5 offen offset:%d' % (vr(8 + 2 * i, 2), 128 * i))
        a.label('L_k0_noxn%s' % lbl)
    a('s_cmp_ge_u32 s6, 4')
    a('s_cbranch_scc1 L_k0_mfma')
    a('s_waitcnt vmcnt(%d)' % (6 if PREFETCH else 0))
    a('v_cmp_gt_u32 vcc, 225, v0')
    a('s_and_saveexec_b64 s[10:11], vcc')
    a('s_cbranch_execz L_k0_wt_restore')
    a('v_lshlrev_b32 v36, 13, v0')
    for pl in range(2):
        for q in range(4):
            a('v_lshl_or_b32 v%d, v%d, 16, v%d' % (128 + 4 * pl + q, 112 + 8 * pl + 2 * q + 1, 112 + 8 * pl + 2 * q))
    a('s_lshl_b32 s8, s3, 6')
    a('s_lshl_b32 s9, s4, 4')
    a('s_add_u32 s8, s8, s9')
    a('s_add_u32 s9, s8, 4096')
    a('buffer_store_dwordx4 v[128:131], v36, s[60:63], s8 offen')
    a('buffer_store_dwordx4 v[132:135], v36, s[60:63], s9 offen')
    a.label('L_k0_wt_restore')
    a('s_mov_b64 exec, s[10:11]')
    xn_store('a')
    stamp(a, 5)
    if os.environ.get('WAVEST0'): dump_wave_stamps(a, [0, 3, 4, 5], SWG, 'k0a')
    a('s_endpgm')
    a.label('L_k0_mfma')
    ACC = 80
    a('s_lshl_b32 s6, s3, 6')
    AF = [40, 48, 56]
    def rd(t):
        buf = AF[t % 3]
        a('ds_read_b128 %s, v36 offset:%d' % (vr(buf, 4), 64 * t))
        a('ds_read_b128 %s, v36 offset:%d' % (vr(buf + 4, 4), 64 * t + 4 * PITCH))
    rd(0)
    rd(1)
    for t in range(14):
        cur = AF[t % 3]
        if t + 2 < 14:
            rd(t + 2)
            a('s_waitcnt lgkmcnt(4)')
        elif t + 1 < 14:
            a('s_waitcnt lgkmcnt(2)')
        else:
            a('s_waitcnt lgkmcnt(0)')
        for mt in range(2):
            for c in range(2):
                d = ACC + 8 * mt + 4 * c
                a('v_mfma_f32_16x16x32_bf16 %s, %s, %s, %s' % (vr(d, 4), vr(cur + 4 * mt, 4), vr(BF + 8 * t + 4 * c, 4), '0' if t == 0 else vr(d, 4)))
    a.nop(10)
    for c in range(2):
        o = 64 + 4 * c
        for mt in range(2):
            d = ACC + 8 * mt + 4 * c
            a('v_cvt_pk_bf16_f32 v%d, v%d, v%d' % (o + 2 * mt, d, d + 1))
            a('v_cvt_pk_bf16_f32 v%d, v%d, v%d' % (o + 2 * mt + 1, d + 2, d + 3))
        a('buffer_store_dwordx4 %s, v%d, s[44:47], s6 offen' % (vr(o, 4), 37 + c))
    xn_store('b')
    a('s_waitcnt vmcnt(0)') if STAMPS else None
    stamp(a, 5)
    if os.environ.get('WAVEST0'): dump_wave_stamps(a, [0, 3, 4, 5], SWG, 'k0b')
    if os.environ.get('ALLWG'):
        a('v_cmp_eq_u32 vcc, 256, v0')
        a('s_and_saveexec_b64 s[62:63], vcc')
        a.srd(40, 34, 35, 1 << 20, 32 << 20)
        a('s_lshl_b32 s8, s2, 5')
        a('v_mov_b32 v1, s8')
        for k, i in enumerate([0, 3, 4, 5]):
            a('v_mov_b32 v2, s%d' % (74 + 2 * i))
            a('v_mov_b32 v3, s%d' % (75 + 2 * i))
            a('buffer_store_dwordx2 v[2:3], v1, s[40:43], 0 offen offset:%d' % (8 * k))
            a.nop(2)
    a.label('L_k0_end')
    a('s_endpgm')
    return a.text(), 212, 32 * PITCH
```

```python
from asmlib import *
from k0 import *

def cs(a, dc, ds, idx, sc, tmp):
    a('v_cvt_f32_u32 v%d, v%d' % (tmp, idx))
    a('v_mul_f32 v%d, s%d, v%d' % (tmp, sc, tmp))
    a('v_cos_f32 v%d, v%d' % (dc, tmp))
    a('v_sin_f32 v%d, v%d' % (ds, tmp))

SF_ZT, SF_YT, SF_WT = 52, 56, 60
S_F0, S_LB, S_T, S_T2, S_I64, S_I32, S_I2K = 64, 65, 66, 67, 68, 69, 70
S_SA, S_SB = 71, 72
WPB = [224, 240]
NR = 4

def fft_wg(a, sw, sq):
    a('v_and_b32 v6, 15, v0')
    a('v_bfe_u32 v1, v0, 6, 2')
    a('v_lshl_add_u32 v4, v1, 4, v6')
    a('v_bfe_u32 v5, v0, 4, 2')
    a('v_and_b32 v2, 255, v0')
    a('v_bfe_u32 v3, v0, 5, 1')
    a('v_lshlrev_b32 v3, 1, v3')
    a('v_xor_b32 v2, v2, v3')
    a('v_lshlrev_b32 v2, 4, v2')
    a('s_lshr_b32 s%d, s%d, 2' % (S_T, sw))
    a('s_lshl_b32 s%d, s%d, 1' % (S_F0, sq))
    a('s_add_u32 s%d, s%d, s%d' % (S_F0, S_F0, S_T))
    a('s_mul_i32 s%d, s%d, 69632' % (S_LB, S_T))
    a('s_and_b32 s%d, s%d, 3' % (S_T2, sw))
    a('s_lshl_b32 s%d, s%d, 10' % (S_T2, S_T2))
    a('s_add_u32 s%d, s%d, s%d' % (S_T2, S_T2, S_LB))
    a.srd(SF_ZT, 34, 35, ZT_WBYTES, ZT_OFF)
    a.srd(SF_YT, 34, 35, YT_BYTES, YT_OFF)
    a.srd(SF_WT, 34, 35, WT_BYTES, WT_OFF)
    a('v_lshlrev_b32 v3, 6, v4')
    a('v_lshl_add_u32 v3, v5, 3, v3')
    def issue_z(c):
        a('s_add_u32 s%d, s%d, %d' % (S_SA, S_F0, 64 * c))
        a('s_mul_i32 s%d, s%d, %d' % (S_SA, S_SA, 2 * ZP))
        a('s_add_u32 s%d, s%d, %d' % (S_T, S_T2, 8192 * c))
        a('s_mov_b32 m0, s%d' % S_T)
        a('s_add_u32 s%d, s%d, %d' % (S_SB, S_SA, ZP))
        a('buffer_load_dwordx4 v2, s[%d:%d], s%d offen lds' % (SF_ZT, SF_ZT + 3, S_SA))
        a('s_add_u32 s%d, s%d, 4096' % (S_T, S_T))
        a('s_mov_b32 m0, s%d' % S_T)
        a.nop(1)
        a('buffer_load_dwordx4 v2, s[%d:%d], s%d offen lds' % (SF_ZT, SF_ZT + 3, S_SB))
    def issue_w(c):
        WP = WPB[c & 1]
        a('s_add_u32 s%d, s%d, %d' % (S_SA, S_F0, 64 * c))
        a('s_mul_i32 s%d, s%d, %d' % (S_SA, S_SA, 2 * ZP))
        a('s_add_u32 s%d, s%d, %d' % (S_SB, S_SA, ZP))
        for pl in range(2):
            for mt in range(2):
                a('buffer_load_dwordx2 %s, v3, s[%d:%d], s%d offen offset:%d' % (vr(WP + 4 * pl + 2 * mt, 2), SF_WT, SF_WT + 3, S_SA + pl, 32 * mt))
    issue_z(0)
    issue_z(1)
    stamp(a, 1)
    WR, WI = 80, 88
    a('s_mov_b32 s%d, 0x%x' % (S_I64, f32bits(1.0 / 64)))
    a('s_mov_b32 s%d, 0x%x' % (S_I32, f32bits(1.0 / 32)))
    a('s_mov_b32 s%d, 0x%x' % (S_I2K, f32bits(1.0 / 2048)))
    C1, S1, NS1 = 16, 24, 32
    C2, S2, NS2 = 40, 48, 56
    TWC, TWS = 64, 72
    T0 = 152
    def rotblk(Cd, Sd, Cs, Ss, P):
        a('v_pk_mul_f32 %s, %s, %s op_sel:[0,0] op_sel_hi:[1,0]' % (vr(Cd, 2), vr(Cs, 2), vr(P, 2)))
        a('v_pk_mul_f32 %s, %s, %s op_sel:[0,0] op_sel_hi:[1,0]' % (vr(Sd, 2), vr(Ss, 2), vr(P, 2)))
        a('v_pk_fma_f32 %s, %s, %s, %s op_sel:[0,1,0] op_sel_hi:[1,1,1] neg_lo:[1,0,0] neg_hi:[1,0,0]' % (vr(Cd, 2), vr(Ss, 2), vr(P, 2), vr(Cd, 2)))
        a('v_pk_fma_f32 %s, %s, %s, %s op_sel:[0,1,0] op_sel_hi:[1,1,1]' % (vr(Sd, 2), vr(Cs, 2), vr(P, 2), vr(Sd, 2)))
    X1C, X1S = 96, 104
    X2C, X2S = 112, 116
    P12, P14, P22, PT2, PT16 = 120, 122, 124, 126, 128
    t = T0
    a('v_lshlrev_b32 v7, 3, v5')
    a('v_mul_u32_u24 v%d, v7, v4' % t)
    a('v_add_u32 v%d, v%d, v4' % (t + 1, t))
    a('v_lshlrev_b32 v%d, 1, v4' % (t + 2))
    a('v_lshlrev_b32 v%d, 2, v4' % (t + 3))
    for e in range(4):
        a('v_and_b32 v%d, 63, v%d' % (t + e, t + e))
    cs(a, X1C, X1S, t, S_I64, t + 4)
    cs(a, X1C + 1, X1S + 1, t + 1, S_I64, t + 5)
    cs(a, P12, P12 + 1, t + 2, S_I64, t + 6)
    cs(a, P14, P14 + 1, t + 3, S_I64, t + 7)
    a('v_lshlrev_b32 v7, 2, v5')
    a('v_mul_u32_u24 v%d, v7, v6' % t)
    a('v_add_u32 v%d, v%d, v6' % (t + 1, t))
    a('v_lshlrev_b32 v%d, 1, v6' % (t + 2))
    for e in range(3):
        a('v_and_b32 v%d, 31, v%d' % (t + e, t + e))
    cs(a, X2C, X2S, t, S_I32, t + 4)
    cs(a, X2C + 1, X2S + 1, t + 1, S_I32, t + 5)
    cs(a, P22, P22 + 1, t + 2, S_I32, t + 6)
    a('v_mul_u32_u24 v%d, v7, v4' % t)
    a('v_add_u32 v%d, v%d, v4' % (t + 1, t))
    a('v_lshlrev_b32 v%d, 1, v4' % (t + 2))
    a('v_lshlrev_b32 v%d, 4, v4' % (t + 3))
    cs(a, TWC, TWS, t, S_I2K, t + 4)
    cs(a, TWC + 1, TWS + 1, t + 1, S_I2K, t + 5)
    cs(a, PT2, PT2 + 1, t + 2, S_I2K, t + 6)
    cs(a, PT16, PT16 + 1, t + 3, S_I2K, t + 7)
    a('v_and_b32 v8, 1, v0')
    a('v_mul_u32_u24 v8, 0x8000, v8')
    a('v_lshl_or_b32 v8, v8, 16, v8')
    rotblk(X1C + 2, X1S + 2, X1C, X1S, P12)
    rotblk(X2C + 2, X2S + 2, X2C, X2S, P22)
    rotblk(TWC + 2, TWS + 2, TWC, TWS, PT2)
    rotblk(X1C + 4, X1S + 4, X1C, X1S, P14)
    rotblk(X1C + 6, X1S + 6, X1C + 2, X1S + 2, P14)
    rotblk(TWC + 4, TWS + 4, TWC, TWS, PT16)
    rotblk(TWC + 6, TWS + 6, TWC + 2, TWS + 2, PT16)
    for q in range(4):
        a('v_cvt_pk_bf16_f32 v%d, v%d, v%d' % (C1 + q, X1C + 2 * q, X1C + 2 * q + 1))
        a('v_cvt_pk_bf16_f32 v%d, v%d, v%d' % (S1 + q, X1S + 2 * q, X1S + 2 * q + 1))
        a('v_cvt_pk_bf16_f32 v%d, -v%d, -v%d' % (NS1 + q, X1S + 2 * q, X1S + 2 * q + 1))
    for T in (C1, S1, NS1):
        for q in range(4):
            a('v_xor_b32 v%d, v8, v%d' % (T + 4 + q, T + q))
    for q in range(2):
        a('v_cvt_pk_bf16_f32 v%d, v%d, v%d' % (C2 + q, X2C + 2 * q, X2C + 2 * q + 1))
        a('v_cvt_pk_bf16_f32 v%d, v%d, v%d' % (S2 + q, X2S + 2 * q, X2S + 2 * q + 1))
        a('v_cvt_pk_bf16_f32 v%d, -v%d, -v%d' % (NS2 + q, X2S + 2 * q, X2S + 2 * q + 1))
    for T in (C2, S2, NS2):
        for q in range(2):
            a('v_xor_b32 v%d, v8, v%d' % (T + 2 + q, T + q))
        for q in range(4):
            a('v_xor_b32 v%d, 0x80000000, v%d' % (T + 4 + q, T + q))
    a('v_lshrrev_b32 v8, 2, v6')
    a('v_and_b32 v9, 3, v6')
    a('v_lshl_add_u32 v8, v5, 3, v8')
    a('v_mul_u32_u24 v11, 72, v8')
    a('v_lshl_add_u32 v11, v9, 4, v11')
    a('v_add_u32 v11, s%d, v11' % S_LB)
    a('v_add_u32 v11, 32768, v11')
    a('v_lshlrev_b32 v8, 6, v8')
    a('v_add_u32 v8, s%d, v8' % S_LB)
    a('v_lshl_add_u32 v10, v9, 3, v8')
    a('v_and_b32 v9, 1, v5')
    a('v_lshl_add_u32 v10, v9, 5, v10')
    a('v_xor_b32 v14, 32, v10')
    a('v_lshlrev_b32 v12, 6, v4')
    a('v_lshl_add_u32 v13, v5, 4, v12')
    a('v_mul_u32_u24 v12, 72, v4')
    a('v_lshl_add_u32 v12, v5, 3, v12')
    a('v_add_u32 v12, s%d, v12' % S_LB)
    a('v_add_u32 v12, 32768, v12')
    def mf(d, x, y, z=False):
        a('v_mfma_f32_16x16x32_bf16 %s, %s, %s, %s' % (vr(d, 4), vr(x, 4), vr(y, 4), '0' if z else vr(d, 4)))
    NEG = ' neg_lo:[1,0,0] neg_hi:[1,0,0]'
    class Col:
        def __init__(self, c):
            self.c = c
            b = 80 + 72 * (c & 1)
            self.ZR, self.ZI, self.ACC, self.T0, self.BR, self.BI = b, b + 16, b + 32, b + 48, b + 64, b + 68
            self.WP = WPB[c & 1]
        def TR(self, mt): return self.ACC + 4 * mt
        def TI(self, mt): return self.ACC + 8 + 4 * mt
        def reads(self, base, mtstep):
            for pl, Z in ((0, self.ZR), (1, self.ZI)):
                for mt in range(2):
                    for ks in range(2):
                        for h in range(2):
                            d = Z + 8 * mt + 4 * ks + 2 * h
                            if base == 10:
                                a('ds_read_b64_tr_b16 %s, v%d offset:%d' % (vr(d, 2), 14 if mt else 10, 8192 * self.c + pl * 4096 + ks * 2048 + h * 256))
                            else:
                                a('ds_read_b64_tr_b16 %s, v%d offset:%d' % (vr(d, 2), base, 9216 * self.c + pl * 4608 + ks * 2304 + h * 288 + mt * 8))
        def big(self, inv):
            Sa, Sb = (NS1, S1) if inv else (S1, NS1)
            for mt in range(2):
                for ks in range(2):
                    zr, zi = self.ZR + 8 * mt + 4 * ks, self.ZI + 8 * mt + 4 * ks
                    mf(self.TR(mt), zr, C1 + 4 * ks, ks == 0)
                    mf(self.TI(mt), zi, C1 + 4 * ks, ks == 0)
                    mf(self.TR(mt), zi, Sa + 4 * ks)
                    mf(self.TI(mt), zr, Sb + 4 * ks)
        def small(self, inv):
            Sa, Sb = (NS2, S2) if inv else (S2, NS2)
            a.nop(2)
            for mt in range(2):
                mf(self.TR(mt), C2 + 4 * mt, self.BR, True)
                mf(self.TI(mt), C2 + 4 * mt, self.BI, True)
                mf(self.TR(mt), Sa + 4 * mt, self.BI)
                mf(self.TI(mt), Sb + 4 * mt, self.BR)
        def pack(self):
            T = self.T0
            for q in range(4):
                a('v_cvt_pk_bf16_f32 v%d, v%d, v%d' % (self.BR + q, T + 2 * q, T + 2 * q + 1))
                a('v_cvt_pk_bf16_f32 v%d, v%d, v%d' % (self.BI + q, T + 8 + 2 * q, T + 8 + 2 * q + 1))
        def twiddle(self, conj):
            T = self.T0
            for i in range(8):
                tr_, ti_ = self.ACC + i, self.ACC + 8 + i
                a('v_mul_f32 v%d, v%d, v%d' % (T + i, tr_, TWC + i))
                a('v_mul_f32 v%d, v%d, v%d' % (T + 8 + i, ti_, TWC + i))
                if not conj:
                    a('v_fmac_f32 v%d, v%d, v%d' % (T + i, ti_, TWS + i))
                    a('v_fma_f32 v%d, -v%d, v%d, v%d' % (T + 8 + i, tr_, TWS + i, T + 8 + i))
                else:
                    a('v_fma_f32 v%d, -v%d, v%d, v%d' % (T + i, ti_, TWS + i, T + i))
                    a('v_fmac_f32 v%d, v%d, v%d' % (T + 8 + i, tr_, TWS + i))
            self.pack()
        def wmul(self):
            T = self.T0
            WR, WI = self.ZR, self.ZR + 8
            for i in range(16):
                src = self.WP + (i >> 1)
                if i & 1:
                    a('v_and_b32 v%d, 0xffff0000, v%d' % (WR + i, src))
                else:
                    a('v_lshlrev_b32 v%d, 16, v%d' % (WR + i, src))
            for i in range(8):
                xr, xi = self.ACC + i, self.ACC + 8 + i
                a('v_mul_f32 v%d, v%d, v%d' % (T + i, xr, WR + i))
                a('v_mul_f32 v%d, v%d, v%d' % (T + 8 + i, xr, WI + i))
                a('v_fma_f32 v%d, -v%d, v%d, v%d' % (T + i, xi, WI + i, T + i))
                a('v_fmac_f32 v%d, v%d, v%d' % (T + 8 + i, xi, WR + i))
            self.pack()
        def t2write(self):
            for mt in range(2):
                a('ds_write_b64 v12, %s offset:%d' % (vr(self.BR + 2 * mt, 2), 9216 * self.c + 32 * mt))
                a('ds_write_b64 v12, %s offset:%d' % (vr(self.BI + 2 * mt, 2), 9216 * self.c + 4608 + 32 * mt))
        def out(self):
            c = self.c
            a('s_add_u32 s%d, s%d, %d' % (S_T, S_F0, 64 * c))
            a('s_mul_i32 s%d, s%d, %d' % (S_SA, S_T, 2 * YP))
            a('s_add_u32 s%d, s%d, %d' % (S_SB, S_SA, YP))
            if c == 0:
                a('s_cmp_eq_u32 s%d, 0' % S_T)
                a('s_cselect_b32 s%d, 0x7ff00000, s%d' % (S_SB, S_SB))
            if c == 3:
                a('s_cmp_eq_u32 s%d, 224' % S_T)
                a('s_cselect_b32 s%d, %d, s%d' % (S_SA, YP, S_SA))
                a('s_cselect_b32 s%d, 0x7ff00000, s%d' % (S_SB, S_SB))
            for q in range(4):
                a('v_cvt_pk_bf16_f32 v%d, v%d, v%d' % (self.BR + q, self.ACC + 2 * q, self.ACC + 2 * q + 1))
                a('v_cvt_pk_bf16_f32 v%d, v%d, v%d' % (self.BI + q, self.ACC + 8 + 2 * q, self.ACC + 8 + 2 * q + 1))
            a('buffer_store_dwordx4 %s, v13, s[%d:%d], s%d offen' % (vr(self.BR, 4), SF_YT, SF_YT + 3, S_SA))
            a('buffer_store_dwordx4 %s, v13, s[%d:%d], s%d offen' % (vr(self.BI, 4), SF_YT, SF_YT + 3, S_SB))
    def cap(fn, *args):
        old = a.lines
        a.lines = []
        fn(*args)
        r = [l for l in a.lines if 's_nop' not in l]
        a.lines = old
        return r
    def mix(mfl, val, step=2):
        out = []
        vi = 0
        for _ in range(2):
            if vi < len(val):
                out.append(val[vi]); vi += 1
            else:
                out.append('    s_nop 0')
        for m in mfl:
            out.append(m)
            for _ in range(step):
                if vi < len(val):
                    out.append(val[vi]); vi += 1
        out += val[vi:]
        a.lines += out
    for p in range(2):
        A, B = Col(2 * p), Col(2 * p + 1)
        if p == 0:
            issue_w(0)
            issue_w(1)
        a('s_waitcnt vmcnt(8)')
        a('s_barrier')
        stamp(a, 2 + 2 * p)
        A.reads(10, 32)
        B.reads(10, 32)
        a('s_waitcnt lgkmcnt(0)')
        A.big(False)
        if p == 0:
            issue_z(2)
        else:
            a.nop(4)
        mix(cap(B.big, False), cap(A.twiddle, False))
        if p == 0:
            issue_z(3)
        mix(cap(A.small, False), cap(B.twiddle, False))
        a('s_waitcnt vmcnt(%d)' % (4 if p == 0 else 0))
        mix(cap(B.small, False), cap(A.wmul))
        mix(cap(A.small, True), cap(B.wmul))
        if p == 0:
            issue_w(2)
            issue_w(3)
        mix(cap(B.small, True), cap(A.twiddle, True))
        A.t2write()
        B.twiddle(True)
        B.t2write()
        stamp(a, 3 + 2 * p)
    a('s_waitcnt lgkmcnt(0)')
    a('s_barrier')
    stamp(a, 6)
    cols = [Col(c) for c in range(4)]
    cols[0].reads(11, 8)
    cols[1].reads(11, 8)
    for p in range(2):
        A, B = cols[2 * p], cols[2 * p + 1]
        a('s_waitcnt lgkmcnt(0)')
        A.big(True)
        a.nop(4)
        mix(cap(B.big, True), ['    s_nop 3'] * 0 + cap(A.out), 1)
        if p == 0:
            cols[2].reads(11, 8)
        a.nop(8)
        B.out()
        if p == 0:
            cols[3].reads(11, 8)
        a.nop(1)
        stamp(a, 7 + p)
    a('s_waitcnt vmcnt(0)') if STAMPS else None
```

```python
from asmlib import *

import os
PREFETCH = int(os.environ.get('PREFETCH', '1'))
WSB = int(os.environ.get('WSB', '0')) << 20
XN_OFF = WSB
ZT_OFF = WSB + (2 << 20)
YT_OFF = WSB + (4 << 20) + (256 << 10)
ZP = int(os.environ.get('ZP', '4224'))
G_OFF = WSB + (6 << 20)
H_OFF = WSB + (8 << 20)
XN_BYTES = 2048 * 448 * 2
ZT_BYTES = 256 * 2 * ZP
ZT_WBYTES = 225 * 2 * ZP
HP = int(os.environ.get('HP', '3712'))
YP = int(os.environ.get('YP', '4224'))
YT_BYTES = 450 * YP
G_ROWS = 480
G_BYTES = G_ROWS * 896
H_BYTES = 2048 * HP
WT_OFF = WSB + (16 << 20)
WT_BYTES = 225 * 2 * ZP

def load_ptrs(a):
    a('s_load_dwordx16 s[16:31], s[0:1], 0')
    a('s_load_dwordx4 s[32:35], s[0:1], 64')

def mod448(a, p, t1, out):
    a('v_lshrrev_b32 v%d, 6, v%d' % (t1, p))
    a('v_mul_u32_u24 v%d, 9363, v%d' % (t1, t1))
    a('v_lshrrev_b32 v%d, 16, v%d' % (t1, t1))
    a('v_mul_u32_u24 v%d, 448, v%d' % (t1, t1))
    a('v_sub_u32 v%d, v%d, v%d' % (out, p, t1))

def gen_k0():
    a = Asm()
    PITCH = 928
    a('s_cmp_ge_u32 s2, 256')
    a('s_cbranch_scc1 L_k0_end')
    stamp(a, 0)
    load_ptrs(a)
    a('s_lshr_b32 s3, s2, 2')
    a('s_and_b32 s4, s2, 3')
    a('v_lshrrev_b32 v1, 3, v0')
    a('v_and_b32 v2, 7, v0')
    a('v_mul_u32_u24 v3, 896, v1')
    a('v_lshl_add_u32 v3, v2, 4, v3')
    a('s_mul_i32 s5, s3, 28672')
    a('s_waitcnt lgkmcnt(0)')
    a.srd(36, 16, 17, XN_BYTES)
    a.srd(40, 34, 35, XN_BYTES, XN_OFF)
    a.srd(44, 34, 35, ZT_BYTES, ZT_OFF)
    a.srd(48, 34, 35, G_BYTES, G_OFF)
    for i in range(7):
        a('buffer_load_dwordx4 %s, v3, s[36:39], s5 offen offset:%d' % (vr(8 + 4 * i, 4), 128 * i))
    a.srd(52, 18, 19, 2048 * 225 * 2)
    a.srd(56, 20, 21, 2048 * 225 * 2)
    a.srd(60, 34, 35, WT_BYTES, WT_OFF)
    a('s_lshl_b32 s8, s4, 3')
    a('s_lshl_b32 s8, s8, 6')
    a('s_add_u32 s8, s8, s3')
    a('s_mul_i32 s8, s8, 450')
    a('v_lshlrev_b32 v36, 1, v0')
    for e in range(8):
        for pl in range(2):
            a('s_add_u32 s9, s8, %d' % (e * 64 * 450))
            a('buffer_load_ushort v%d, v36, s[%d:%d], s9 offen' % (212 + 8 * pl + e, 52 + 4 * pl, 55 + 4 * pl))
    if PREFETCH:
        a('s_lshl_b32 s9, s2, 12')
        a('v_lshl_add_u32 v37, v0, 4, s9')
        a('s_mov_b32 s9, 0x100000')
        PS = [64, 68, 12]
        for m in range(3):
            a.srd(PS[m], 24 + 2 * m, 25 + 2 * m, 448 * 3584)
        for m in (2, 0, 1):
            a('buffer_load_dwordx4 %s, v37, s[%d:%d], 0 offen' % (vr(236 + 4 * m, 4), PS[m], PS[m] + 3))
            a('buffer_load_dwordx4 %s, v37, s[%d:%d], s9 offen' % (vr(248 + 4 * (m & 1), 4), PS[m], PS[m] + 3))
    a('v_and_b32 v4, 15, v0')
    a('v_lshrrev_b32 v5, 6, v0')
    a('v_lshl_add_u32 v4, v5, 4, v4')
    a('s_lshl_b32 s6, s4, 6')
    a('v_add_u32 v4, s6, v4')
    a('v_bfe_u32 v5, v0, 4, 2')
    a('v_lshlrev_b32 v5, 3, v5')
    inv448 = f32bits(1.0 / 448.0)
    a('s_mov_b32 s7, 0x%x' % inv448)
    a('v_cvt_f32_u32 v6, v4')
    a('v_mul_f32 v6, s7, v6')
    a('v_sin_f32 v7, v6')
    a('v_cos_f32 v6, v6')
    BF = 100
    C0, S0 = 44, 52
    for t in range(14):
        a('v_add_u32 v40, %d, v5' % (32 * t))
        a('v_mul_u32_u24 v41, v40, v4')
        mod448(a, 41, 42, 43)
        a('v_cvt_f32_u32 v43, v43')
        a('v_mul_f32 v43, s7, v43')
        a('v_cos_f32 v%d, v43' % C0)
        a('v_sin_f32 v%d, v43' % S0)
        a.nop(1)
        for j in range(7):
            a('v_mul_f32 v40, v%d, v7' % (S0 + j))
            a('v_mul_f32 v41, v%d, v7' % (C0 + j))
            a('v_fma_f32 v%d, v%d, v6, -v40' % (C0 + j + 1, C0 + j))
            a('v_fma_f32 v%d, v%d, v6, v41' % (S0 + j + 1, S0 + j))
        for q in range(4):
            a('v_cvt_pk_bf16_f32 v%d, v%d, v%d' % (BF + 8 * t + q, C0 + 2 * q, C0 + 2 * q + 1))
            a('v_cvt_pk_bf16_f32 v%d, -v%d, -v%d' % (BF + 8 * t + 4 + q, S0 + 2 * q, S0 + 2 * q + 1))
    stamp(a, 1)
    a('s_cmp_ge_u32 s2, 224')
    a('s_cbranch_scc1 L_k0_nog')
    a('s_mov_b32 s8, 0x%x' % f32bits(2.0 / 448.0 / 2048.0))
    a('s_cmp_eq_u32 s2, 0')
    a('s_cselect_b32 s8, 0x%x, s8' % f32bits(1.0 / 448.0 / 2048.0))
    a('s_cmp_eq_u32 s2, 224')
    a('s_cselect_b32 s8, 0x%x, s8' % f32bits(1.0 / 448.0 / 2048.0))
    a('s_cmp_gt_u32 s2, 224')
    a('s_cselect_b32 s8, 0, s8')
    a('v_cmp_gt_u32 vcc, 224, v0')
    a('s_and_saveexec_b64 s[10:11], vcc')
    a('s_cbranch_execz L_k0_g_restore')
    a('v_cmp_le_u32 vcc, 112, v0')
    a.nop(2)
    a('v_cndmask_b32 v40, 0, 1, vcc')
    a('v_mul_u32_u24 v41, 112, v40')
    a('v_sub_u32 v41, v0, v41')
    a('v_cvt_f32_u32 v42, v40')
    a('v_mul_f32 v42, 0.25, v42')
    a('v_mov_b32 v47, s2')
    a('s_cmp_lg_u32 s2, 0')
    a('s_cbranch_scc1 L_k0_g_f')
    a('v_mul_u32_u24 v47, 224, v40')
    a('v_mov_b32 v42, 0')
    a.label('L_k0_g_f')
    a('v_lshlrev_b32 v43, 2, v41')
    for e in range(4):
        a('v_add_u32 v44, %d, v43' % e)
        a('v_mul_u32_u24 v44, v47, v44')
        mod448(a, 44, 45, 46)
        a('v_cvt_f32_u32 v46, v46')
        a('v_fma_f32 v46, v46, s7, v42')
        a('v_cos_f32 v%d, v46' % (48 + e))
        a.nop(1)
        a('v_mul_f32 v%d, s8, v%d' % (48 + e, 48 + e))
    a('v_cvt_pk_bf16_f32 v52, v48, v49')
    a('v_cvt_pk_bf16_f32 v53, v50, v51')
    a('s_lshl_b32 s9, s2, 1')
    a('v_add_u32 v44, s9, v40')
    a('v_mul_u32_u24 v44, 896, v44')
    a('v_lshl_add_u32 v44, v41, 3, v44')
    a('buffer_store_dwordx2 v[52:53], v44, s[48:51], 0 offen')
    a.label('L_k0_g_restore')
    a('s_mov_b64 exec, s[10:11]')
    a.label('L_k0_nog')
    stamp(a, 2)
    F0 = 40
    a('s_waitcnt vmcnt(%d)' % (6 if PREFETCH else 0))
    stamp(a, 3)
    a('v_cmp_gt_u32 vcc, 225, v0')
    a('s_and_saveexec_b64 s[10:11], vcc')
    a('s_cbranch_execz L_k0_wt_restore')
    a('v_lshlrev_b32 v36, 13, v0')
    for pl in range(2):
        for q in range(4):
            a('v_lshl_or_b32 v%d, v%d, 16, v%d' % (228 + 4 * pl + q, 212 + 8 * pl + 2 * q + 1, 212 + 8 * pl + 2 * q))
    a('s_lshl_b32 s8, s3, 6')
    a('s_lshl_b32 s9, s4, 4')
    a('s_add_u32 s8, s8, s9')
    a('s_add_u32 s9, s8, 4096')
    a('buffer_store_dwordx4 v[228:231], v36, s[60:63], s8 offen')
    a('buffer_store_dwordx4 v[232:235], v36, s[60:63], s9 offen')
    a.label('L_k0_wt_restore')
    a('s_mov_b64 exec, s[10:11]')
    for i in range(28):
        a('v_lshlrev_b32 v%d, 16, v%d' % (F0 + 2 * i, 8 + i))
        a('v_and_b32 v%d, 0xffff0000, v%d' % (F0 + 2 * i + 1, 8 + i))
    for k in range(4):
        a('v_add_f32 v%d, v%d, v%d' % (96 + k, F0 + k, F0 + 4 + k))
    for i in range(8, 56):
        a('v_add_f32 v%d, v%d, v%d' % (96 + (i & 3), 96 + (i & 3), F0 + i))
    a('v_add_f32 v96, v96, v97')
    a('v_add_f32 v98, v98, v99')
    a('v_add_f32 v96, v96, v98')
    def red8(r):
        a.nop(2)
        a('v_add_f32_dpp v%d, v%d, v%d quad_perm:[1,0,3,2] row_mask:0xf bank_mask:0xf' % (r, r, r))
        a.nop(2)
        a('v_add_f32_dpp v%d, v%d, v%d quad_perm:[2,3,0,1] row_mask:0xf bank_mask:0xf' % (r, r, r))
        a.nop(2)
        a('v_add_f32_dpp v%d, v%d, v%d row_half_mirror row_mask:0xf bank_mask:0xf' % (r, r, r))
    red8(96)
    a('v_mul_f32 v97, s7, v96')
    a('v_mov_b32 v96, 0')
    a('v_mov_b32 v98, 0')
    for i in range(56):
        acc = 96 if (i & 1) == 0 else 98
        a('v_sub_f32 v99, v%d, v97' % (F0 + i))
        a('v_fmac_f32 v%d, v99, v99' % acc)
    a('v_add_f32 v96, v96, v98')
    red8(96)
    a('v_mul_f32 v96, s7, v96')
    a('v_cvt_pk_bf16_f32 v98, v97, v96')
    a('v_lshlrev_b32 v97, 16, v98')
    a('v_and_b32 v96, 0xffff0000, v98')
    a('v_add_f32 v96, 0x%x, v96' % f32bits(1e-5))
    a('v_cvt_pk_bf16_f32 v96, v96, v96')
    a('v_lshlrev_b32 v96, 16, v96')
    a('v_sqrt_f32 v96, v96')
    a.nop(1)
    a('v_cvt_pk_bf16_f32 v96, v96, v96')
    a('v_lshlrev_b32 v96, 16, v96')
    a('v_rcp_f32 v96, v96')
    a.nop(1)
    for i in range(28):
        x0, x1 = F0 + 2 * i, F0 + 2 * i + 1
        a('v_sub_f32 v%d, v%d, v97' % (x0, x0))
        a('v_sub_f32 v%d, v%d, v97' % (x1, x1))
        a('v_cvt_pk_bf16_f32 v99, v%d, v%d' % (x0, x1))
        a('v_lshlrev_b32 v%d, 16, v99' % x0)
        a('v_and_b32 v%d, 0xffff0000, v99' % x1)
        a('v_mul_f32 v%d, v%d, v96' % (x0, x0))
        a('v_mul_f32 v%d, v%d, v96' % (x1, x1))
        a('v_cvt_pk_bf16_f32 v%d, v%d, v%d' % (8 + i, x0, x1))
    a('v_mul_u32_u24 v98, %d, v1' % PITCH)
    a('v_lshl_add_u32 v98, v2, 4, v98')
    for i in range(7):
        a('ds_write_b128 v98, %s offset:%d' % (vr(8 + 4 * i, 4), 128 * i))
    a('s_cmp_lg_u32 s4, 0')
    a('s_cbranch_scc1 L_k0_noxn')
    for i in range(7):
        a('buffer_store_dwordx4 %s, v3, s[40:43], s5 offen offset:%d' % (vr(8 + 4 * i, 4), 128 * i))
    a.label('L_k0_noxn')
    stamp(a, 4)
    ACC = 60
    for i in range(16):
        a('v_mov_b32 v%d, 0' % (ACC + i))
    a('v_and_b32 v84, 15, v0')
    a('v_lshrrev_b32 v85, 2, v84')
    a('v_and_b32 v84, 3, v84')
    a('v_lshl_add_u32 v84, v85, 3, v84')
    a('v_mul_u32_u24 v84, %d, v84' % PITCH)
    a('v_lshl_add_u32 v84, v5, 1, v84')
    a('s_waitcnt lgkmcnt(0)')
    a('s_barrier')
    stamp(a, 5)
    AF = [76, 88]
    AF = [76, 40]
    def rd(t, buf):
        a('ds_read_b128 %s, v84 offset:%d' % (vr(buf, 4), 64 * t))
        a('ds_read_b128 %s, v84 offset:%d' % (vr(buf + 4, 4), 64 * t + 4 * PITCH))
    rd(0, AF[0])
    for t in range(14):
        cur = AF[t & 1]
        if t + 1 < 14:
            rd(t + 1, AF[(t + 1) & 1])
            a('s_waitcnt lgkmcnt(2)')
        else:
            a('s_waitcnt lgkmcnt(0)')
        for mt in range(2):
            for c in range(2):
                d = ACC + 8 * mt + 4 * c
                a('v_mfma_f32_16x16x32_bf16 %s, %s, %s, %s' % (vr(d, 4), vr(cur + 4 * mt, 4), vr(BF + 8 * t + 4 * c, 4), vr(d, 4)))
    a.nop(10)
    stamp(a, 6)
    a('v_lshlrev_b32 v85, 13, v4')
    a('v_lshl_add_u32 v85, v5, 1, v85')
    a('v_add_u32 v86, 4096, v85')
    a('s_lshl_b32 s6, s3, 6')
    for c in range(2):
        o = 88 + 4 * c
        for mt in range(2):
            d = ACC + 8 * mt + 4 * c
            a('v_cvt_pk_bf16_f32 v%d, v%d, v%d' % (o + 2 * mt, d, d + 1))
            a('v_cvt_pk_bf16_f32 v%d, v%d, v%d' % (o + 2 * mt + 1, d + 2, d + 3))
        a('buffer_store_dwordx4 %s, v%d, s[44:47], s6 offen' % (vr(o, 4), 85 + c))
    a('s_waitcnt vmcnt(0)') if STAMPS else None
    stamp(a, 7)
    dump_stamps(a, 8, 100, 'k0')
    a.label('L_k0_end')
    a('s_endpgm')
    return a.text(), 256, 32 * PITCH
```

```python
from asmlib import *
from k0 import *

def gen_k0():
    a = Asm()
    PITCH = 928
    SWG = int(os.environ.get('STAMPWG', '100'))
    inv448 = f32bits(1.0 / 448.0)
    a('s_cmp_ge_u32 s2, 256')
    a('s_cbranch_scc1 L_k0_end')
    stamp(a, 0)
    load_ptrs(a)
    a('v_lshrrev_b32 v1, 6, v0')
    if int(os.environ.get('K0MAP', '1')):
        a('s_and_b32 s3, s2, 7')
        a('s_lshl_b32 s3, s3, 3')
        a('s_lshr_b32 s4, s2, 5')
        a('s_add_u32 s3, s3, s4')
        a('s_bfe_u32 s4, s2, 0x20003')
    else:
        a('s_lshr_b32 s3, s2, 2')
        a('s_and_b32 s4, s2, 3')
    a('v_readfirstlane_b32 s6, v1')
    a('s_mov_b32 s7, 0x%x' % inv448)
    a('v_lshrrev_b32 v1, 4, v0')
    a('v_and_b32 v2, 15, v0')
    a('v_mul_u32_u24 v3, 896, v1')
    a('v_lshl_add_u32 v3, v2, 3, v3')
    a('s_mul_i32 s5, s3, 28672')
    a('s_waitcnt lgkmcnt(0)')
    a.srd(36, 16, 17, XN_BYTES)
    a.srd(40, 34, 35, XN_BYTES, XN_OFF)
    for i in range(7):
        a('buffer_load_dwordx2 %s, v3, s[36:39], s5 offen offset:%d' % (vr(8 + 2 * i, 2), 128 * i))
    a('s_cmp_ge_u32 s6, 4')
    a('s_cbranch_scc1 L_k0_bgen')
    a('s_waitcnt vmcnt(0)')
    a.srd(52, 18, 19, 2048 * 225 * 2)
    a.srd(56, 20, 21, 2048 * 225 * 2)
    a.srd(60, 34, 35, WT_BYTES, WT_OFF)
    a('s_lshl_b32 s8, s4, 3')
    a('s_lshl_b32 s8, s8, 6')
    a('s_add_u32 s8, s8, s3')
    a('s_mul_i32 s8, s8, 450')
    a('v_lshlrev_b32 v36, 1, v0')
    for e in range(8):
        for pl in range(2):
            a('s_add_u32 s9, s8, %d' % (e * 64 * 450))
            a('buffer_load_ushort v%d, v36, s[%d:%d], s9 offen' % (112 + 8 * pl + e, 52 + 4 * pl, 55 + 4 * pl))
    if PREFETCH:
        a('s_lshl_b32 s9, s2, 12')
        a('v_lshl_add_u32 v37, v0, 4, s9')
        a('s_mov_b32 s9, 0x100000')
        PS = [64, 68, 12]
        for m in range(3):
            a.srd(PS[m], 24 + 2 * m, 25 + 2 * m, 448 * 3584)
        for m in (2, 0, 1):
            a('buffer_load_dwordx4 %s, v37, s[%d:%d], 0 offen' % (vr(136 + 4 * m, 4), PS[m], PS[m] + 3))
            a('buffer_load_dwordx4 %s, v37, s[%d:%d], s9 offen' % (vr(148 + 4 * (m & 1), 4), PS[m], PS[m] + 3))
    a('s_branch L_k0_ln')
    a.label('L_k0_bgen')
    CODEPF = int(os.environ.get('CODEPF', '1'))
    TOUCH = int(os.environ.get('TOUCH', '0'))
    if CODEPF:
        NPF = 24 if TOUCH else 16
        a('s_cmp_ge_u32 s2, %d' % NPF)
        a('s_cbranch_scc1 L_k0_nopf')
        if TOUCH:
            a('s_cmp_lt_u32 s2, 16')
            a('s_cbranch_scc1 L_k0_cpf')
            a('v_and_b32 v96, 63, v0')
            a('v_min_u32 v96, 8, v96')
            a('v_lshlrev_b32 v96, 21, v96')
            a('v_mov_b32 v97, s35')
            a('v_add_co_u32 v96, vcc, s34, v96')
            a('v_addc_co_u32 v97, vcc, 0, v97, vcc')
            for i, sp in enumerate((18, 20, 24, 26, 28, 30)):
                a('v_writelane_b32 v96, s%d, %d' % (sp, 16 + i))
                a('v_writelane_b32 v97, s%d, %d' % (sp + 1, 16 + i))
            a('global_load_dword v99, v[96:97], off')
            a('s_branch L_k0_nopf')
            a.label('L_k0_cpf')
        a('s_getpc_b64 s[96:97]')
        a.label('L_k0_pc')
        a('s_mov_b32 s98, k1_kernel-L_k0_pc')
        a('s_mov_b32 s99, L_k3_end-k1_kernel-4')
        a('s_cmp_lt_u32 s2, 8')
        a('s_cselect_b32 s98, k0_kernel-L_k0_pc, s98')
        a('s_cselect_b32 s99, L_k0_end-k0_kernel-4, s99')
        a('s_ashr_i32 s100, s98, 31')
        a('s_add_u32 s96, s96, s98')
        a('s_addc_u32 s97, s97, s100')
        a('v_and_b32 v98, 255, v0')
        a('v_lshlrev_b32 v98, 7, v98')
        a('v_min_u32 v98, s99, v98')
        a('global_load_dword v99, v98, s[96:97]')
        a.label('L_k0_nopf')
    a('v_and_b32 v4, 15, v0')
    a('v_bfe_u32 v5, v0, 6, 2')
    a('v_lshl_add_u32 v4, v5, 4, v4')
    a('s_lshl_b32 s8, s4, 6')
    a('v_add_u32 v4, s8, v4')
    a('v_bfe_u32 v5, v0, 4, 2')
    a('v_lshlrev_b32 v5, 3, v5')
    BF = 100
    CA, SA, CB, SB = 40, 48, 56, 64
    P2, P4, P32 = 72, 74, 76
    def evalcs(dc, ds, t):
        mod448(a, t, t + 1, t + 2)
        a('v_cvt_f32_u32 v%d, v%d' % (t + 2, t + 2))
        a('v_mul_f32 v%d, s7, v%d' % (t + 2, t + 2))
        a('v_cos_f32 v%d, v%d' % (dc, t + 2))
        a('v_sin_f32 v%d, v%d' % (ds, t + 2))
    a('v_mul_u32_u24 v80, v5, v4')
    a('v_add_u32 v83, v80, v4')
    a('v_lshlrev_b32 v86, 1, v4')
    a('v_lshlrev_b32 v89, 2, v4')
    a('v_lshlrev_b32 v92, 5, v4')
    evalcs(CA, SA, 80)
    evalcs(CA + 1, SA + 1, 83)
    evalcs(P2, P2 + 1, 86)
    evalcs(P4, P4 + 1, 89)
    evalcs(P32, P32 + 1, 92)
    a.nop(1)
    def rotblk(Cd, Sd, Cs, Ss, P):
        a('v_pk_mul_f32 %s, %s, %s op_sel:[0,0] op_sel_hi:[1,0]' % (vr(Cd, 2), vr(Cs, 2), vr(P, 2)))
        a('v_pk_mul_f32 %s, %s, %s op_sel:[0,0] op_sel_hi:[1,0]' % (vr(Sd, 2), vr(Ss, 2), vr(P, 2)))
        a('v_pk_fma_f32 %s, %s, %s, %s op_sel:[0,1,0] op_sel_hi:[1,1,1] neg_lo:[1,0,0] neg_hi:[1,0,0]' % (vr(Cd, 2), vr(Ss, 2), vr(P, 2), vr(Cd, 2)))
        a('v_pk_fma_f32 %s, %s, %s, %s op_sel:[0,1,0] op_sel_hi:[1,1,1]' % (vr(Sd, 2), vr(Cs, 2), vr(P, 2), vr(Sd, 2)))
    rotblk(CA + 2, SA + 2, CA, SA, P2)
    rotblk(CA + 4, SA + 4, CA, SA, P4)
    rotblk(CA + 6, SA + 6, CA + 2, SA + 2, P4)
    bufs = [(CA, SA), (CB, SB)]
    for t in range(14):
        C0, S0 = bufs[t & 1]
        C1, S1 = bufs[(t + 1) & 1]
        if t + 1 < 14:
            for q in range(4):
                rotblk(C1 + 2 * q, S1 + 2 * q, C0 + 2 * q, S0 + 2 * q, P32)
        for q in range(4):
            a('v_cvt_pk_bf16_f32 v%d, v%d, v%d' % (BF + 8 * t + q, C0 + 2 * q, C0 + 2 * q + 1))
            a('v_cvt_pk_bf16_f32 v%d, -v%d, -v%d' % (BF + 8 * t + 4 + q, S0 + 2 * q, S0 + 2 * q + 1))
    a('v_and_b32 v36, 15, v0')
    a('v_lshrrev_b32 v37, 2, v36')
    a('v_and_b32 v36, 3, v36')
    a('v_lshl_add_u32 v36, v37, 3, v36')
    a('v_mul_u32_u24 v36, %d, v36' % PITCH)
    a('v_lshl_add_u32 v36, v5, 1, v36')
    a('v_mul_u32_u24 v37, %d, v4' % (2 * ZP))
    a('v_lshl_add_u32 v37, v5, 1, v37')
    a('v_add_u32 v38, %d, v37' % ZP)
    a.srd(44, 34, 35, ZT_WBYTES, ZT_OFF)
    if CODEPF:
        a('s_cmp_lt_u32 s2, %d' % NPF)
        a('s_cbranch_scc1 L_k0_w1')
        a('s_waitcnt vmcnt(0)')
        a.label('L_k0_w1')
        a('s_waitcnt vmcnt(1)')
    else:
        a('s_waitcnt vmcnt(0)')
    a.label('L_k0_ln')
    stamp(a, 3)
    F0 = 40
    for i in range(14):
        a('v_lshlrev_b32 v%d, 16, v%d' % (F0 + 2 * i, 8 + i))
        a('v_and_b32 v%d, 0xffff0000, v%d' % (F0 + 2 * i + 1, 8 + i))
    a('v_pk_add_f32 v[72:73], %s, %s' % (vr(F0, 2), vr(F0 + 4, 2)))
    a('v_pk_add_f32 v[74:75], %s, %s' % (vr(F0 + 2, 2), vr(F0 + 6, 2)))
    for i in range(4, 14):
        acc = 72 + 2 * (i & 1)
        a('v_pk_add_f32 %s, %s, %s' % (vr(acc, 2), vr(acc, 2), vr(F0 + 2 * i, 2)))
    a('v_pk_add_f32 v[72:73], v[72:73], v[74:75]')
    a('v_add_f32 v72, v72, v73')
    def red16(r):
        for ctl in ('quad_perm:[1,0,3,2]', 'quad_perm:[2,3,0,1]', 'row_half_mirror', 'row_mirror'):
            a.nop(2)
            a('v_add_f32_dpp v%d, v%d, v%d %s row_mask:0xf bank_mask:0xf' % (r, r, r, ctl))
    red16(72)
    a('v_mul_f32 v76, s7, v72')
    SUBM = ' op_sel_hi:[1,0] neg_lo:[0,1] neg_hi:[0,1]'
    for i in range(14):
        acc = 72 + 2 * (i & 1)
        t = 80 + 2 * (i & 3)
        a('v_pk_add_f32 %s, %s, v[76:77]%s' % (vr(t, 2), vr(F0 + 2 * i, 2), SUBM))
        if i < 2:
            a('v_pk_mul_f32 %s, %s, %s' % (vr(acc, 2), vr(t, 2), vr(t, 2)))
        else:
            a('v_pk_fma_f32 %s, %s, %s, %s' % (vr(acc, 2), vr(t, 2), vr(t, 2), vr(acc, 2)))
    a('v_pk_add_f32 v[72:73], v[72:73], v[74:75]')
    a('v_add_f32 v72, v72, v73')
    red16(72)
    a('v_mul_f32 v72, s7, v72')
    a('v_cvt_pk_bf16_f32 v74, v76, v72')
    a('v_lshlrev_b32 v76, 16, v74')
    a('v_and_b32 v72, 0xffff0000, v74')
    a('v_add_f32 v72, 0x%x, v72' % f32bits(1e-5))
    a('v_cvt_pk_bf16_f32 v72, v72, v72')
    a('v_lshlrev_b32 v72, 16, v72')
    a('v_sqrt_f32 v72, v72')
    a.nop(1)
    a('v_cvt_pk_bf16_f32 v72, v72, v72')
    a('v_lshlrev_b32 v72, 16, v72')
    a('v_rcp_f32 v78, v72')
    a.nop(1)
    for i in range(14):
        x0 = F0 + 2 * i
        a('v_pk_add_f32 %s, %s, v[76:77]%s' % (vr(x0, 2), vr(x0, 2), SUBM))
        a('v_cvt_pk_bf16_f32 v75, v%d, v%d' % (x0, x0 + 1))
        a('v_lshlrev_b32 v%d, 16, v75' % x0)
        a('v_and_b32 v%d, 0xffff0000, v75' % (x0 + 1))
        a('v_pk_mul_f32 %s, %s, v[78:79] op_sel_hi:[1,0]' % (vr(x0, 2), vr(x0, 2)))
        a('v_cvt_pk_bf16_f32 v%d, v%d, v%d' % (8 + i, x0, x0 + 1))
    a('v_mul_u32_u24 v74, %d, v1' % PITCH)
    a('v_lshl_add_u32 v74, v2, 3, v74')
    for i in range(7):
        a('ds_write_b64 v74, %s offset:%d' % (vr(8 + 2 * i, 2), 128 * i))
    XNE = os.environ.get('XNE')
    def xn_store(lbl, force=False):
        if XNE is not None and lbl == 'b' and not force: return
        a('s_cmp_lg_u32 s4, 0')
        a('s_cbranch_scc1 L_k0_noxn%s' % lbl)
        for i in range(7):
            a('buffer_store_dwordx2 %s, v3, s[40:43], s5 offen offset:%d %s' % (vr(8 + 2 * i, 2), 128 * i, XNE or ''))
        a.label('L_k0_noxn%s' % lbl)
    a('s_waitcnt lgkmcnt(0)')
    stamp(a, 4)
    a('s_barrier')
    a('s_cmp_ge_u32 s6, 4')
    a('s_cbranch_scc1 L_k0_mfma')
    a('s_waitcnt vmcnt(%d)' % (6 if PREFETCH else 0))
    a('v_cmp_gt_u32 vcc, 225, v0')
    a('s_and_saveexec_b64 s[10:11], vcc')
    a('s_cbranch_execz L_k0_wt_restore')
    a('v_mul_u32_u24 v36, %d, v0' % (2 * ZP))
    for pl in range(2):
        for q in range(4):
            a('v_lshl_or_b32 v%d, v%d, 16, v%d' % (128 + 4 * pl + q, 112 + 8 * pl + 2 * q + 1, 112 + 8 * pl + 2 * q))
    a('s_lshl_b32 s8, s3, 6')
    a('s_lshl_b32 s9, s4, 4')
    a('s_add_u32 s8, s8, s9')
    a('s_add_u32 s9, s8, %d' % ZP)
    a('buffer_store_dwordx4 v[128:131], v36, s[60:63], s8 offen')
    a('buffer_store_dwordx4 v[132:135], v36, s[60:63], s9 offen')
    a.label('L_k0_wt_restore')
    a('s_mov_b64 exec, s[10:11]')
    xn_store('a')
    stamp(a, 5)
    if os.environ.get('WAVEST0'): dump_wave_stamps(a, [0, 3, 4, 5], SWG, 'k0a')
    a('s_endpgm')
    a.label('L_k0_mfma')
    ACC = 80
    a('s_lshl_b32 s6, s3, 6')
    AF = [40, 48, 56]
    def rd(t):
        buf = AF[t % 3]
        a('ds_read_b128 %s, v36 offset:%d' % (vr(buf, 4), 64 * t))
        a('ds_read_b128 %s, v36 offset:%d' % (vr(buf + 4, 4), 64 * t + 4 * PITCH))
    rd(0)
    rd(1)
    if XNE is not None: xn_store('b', True)
    for t in range(14):
        cur = AF[t % 3]
        if t + 2 < 14:
            rd(t + 2)
            a('s_waitcnt lgkmcnt(4)')
        elif t + 1 < 14:
            a('s_waitcnt lgkmcnt(2)')
        else:
            a('s_waitcnt lgkmcnt(0)')
        for mt in range(2):
            for c in range(2):
                d = ACC + 8 * mt + 4 * c
                a('v_mfma_f32_16x16x32_bf16 %s, %s, %s, %s' % (vr(d, 4), vr(cur + 4 * mt, 4), vr(BF + 8 * t + 4 * c, 4), '0' if t == 0 else vr(d, 4)))
    a.nop(10)
    for c in range(2):
        o = 64 + 4 * c
        for mt in range(2):
            d = ACC + 8 * mt + 4 * c
            a('v_cvt_pk_bf16_f32 v%d, v%d, v%d' % (o + 2 * mt, d, d + 1))
            a('v_cvt_pk_bf16_f32 v%d, v%d, v%d' % (o + 2 * mt + 1, d + 2, d + 3))
        a('buffer_store_dwordx4 %s, v%d, s[44:47], s6 offen' % (vr(o, 4), 37 + c))
    xn_store('b')
    a('s_waitcnt vmcnt(0)') if STAMPS else None
    stamp(a, 5)
    if os.environ.get('WAVEST0'): dump_wave_stamps(a, [0, 3, 4, 5], SWG, 'k0b')
    if os.environ.get('ALLWG'):
        a('v_cmp_eq_u32 vcc, 256, v0')
        a('s_and_saveexec_b64 s[62:63], vcc')
        a.srd(40, 34, 35, 1 << 20, 32 << 20)
        a('s_lshl_b32 s8, s2, 5')
        a('v_mov_b32 v1, s8')
        for k, i in enumerate([0, 3, 4, 5]):
            a('v_mov_b32 v2, s%d' % (74 + 2 * i))
            a('v_mov_b32 v3, s%d' % (75 + 2 * i))
            a('buffer_store_dwordx2 v[2:3], v1, s[40:43], 0 offen offset:%d' % (8 * k))
            a.nop(2)
    a.label('L_k0_end')
    a('s_endpgm')
    return a.text(), 212, 32 * PITCH
```

```python
from asmlib import *
from k0 import *
import fft3 as fft2
EXP = int(os.environ.get('EXP', '0'))

def gelu_epilogue(a, ACC, T, OUT, store):
    KC, KK = T + 8, T + 10
    for v in range(2):
        for p in range(8):
            g0 = ACC + 16 * v + 2 * p
            u0 = g0 + 32
            t = T + 2 + 2 * (p & 1) * 0
            a('v_cvt_pk_bf16_f32 v%d, v%d, v%d' % (T, g0, g0 + 1))
            a('v_cvt_pk_bf16_f32 v%d, v%d, v%d' % (T + 1, u0, u0 + 1))
            a('v_lshlrev_b32 v%d, 16, v%d' % (g0, T))
            a('v_and_b32 v%d, 0xffff0000, v%d' % (g0 + 1, T))
            a('v_lshlrev_b32 v%d, 16, v%d' % (u0, T + 1))
            a('v_and_b32 v%d, 0xffff0000, v%d' % (u0 + 1, T + 1))
            a('v_pk_mul_f32 %s, %s, %s' % (vr(t, 2), vr(g0, 2), vr(g0, 2)))
            a('v_pk_fma_f32 %s, %s, %s, %s' % (vr(t, 2), vr(t, 2), vr(KC, 2), vr(KK, 2)))
            a('v_pk_mul_f32 %s, %s, %s' % (vr(t, 2), vr(t, 2), vr(g0, 2)))
            a('v_exp_f32 v%d, v%d' % (t, t))
            a('v_exp_f32 v%d, v%d' % (t + 1, t + 1))
            a.nop(1)
            a('v_pk_add_f32 %s, %s, 1.0 op_sel_hi:[1,0]' % (vr(t, 2), vr(t, 2)))
            a('v_rcp_f32 v%d, v%d' % (t, t))
            a('v_rcp_f32 v%d, v%d' % (t + 1, t + 1))
            a.nop(1)
            a('v_pk_mul_f32 %s, %s, %s' % (vr(t, 2), vr(t, 2), vr(g0, 2)))
            a('v_cvt_pk_bf16_f32 v%d, v%d, v%d' % (T, t, t + 1))
            a('v_lshlrev_b32 v%d, 16, v%d' % (t, T))
            a('v_and_b32 v%d, 0xffff0000, v%d' % (t + 1, T))
            a('v_pk_mul_f32 %s, %s, %s' % (vr(t, 2), vr(t, 2), vr(u0, 2)))
            a('v_cvt_pk_bf16_f32 v%d, v%d, v%d' % (OUT + 8 * v + p, t, t + 1))
        for hh in range(2):
            store(v, hh, OUT + 8 * v + 4 * hh)

def gen_k1():
    a = Asm()
    NS = 3
    STG = 49152
    BOFF = 32768
    UPO = 8192
    SWG = int(os.environ.get('STAMPWG', '100'))
    VD, VA0, VA1 = 6, 20, 21
    a('s_cmp_ge_u32 s2, 256')
    a('s_cbranch_scc1 L_k1_end')
    stamp(a, 0)
    load_ptrs(a)
    a('v_lshrrev_b32 v1, 6, v0')
    a('v_and_b32 v2, 63, v0')
    a('v_readfirstlane_b32 s3, v1')
    a('s_cmp_ge_u32 s2, 32')
    a('s_cbranch_scc1 L_k1_gemm')
    a('s_mov_b32 s4, s2')
    a('s_waitcnt lgkmcnt(0)')
    fft2.fft_wg(a, 3, 4)
    stamp(a, 9)
    if os.environ.get('WAVEST'): dump_wave_stamps(a, [int(x) for x in os.environ['WAVEST'].split(',')], SWG, 'k1f')
    else: dump_stamps(a, 12, SWG, 'k1f')
    a('s_endpgm')
    a.label('L_k1_gemm')
    K1MAP = int(os.environ.get('K1MAP', '0'))
    if K1MAP == 1:
        a('s_and_b32 s4, s2, 7')
        a('s_lshr_b32 s5, s2, 3')
        a('s_sub_u32 s5, s5, 4')
    elif K1MAP == 2:
        a('s_and_b32 s4, s2, 7')
        a('s_lshr_b32 s5, s2, 3')
        a('s_sub_u32 s5, s5, 4')
        a('s_and_b32 s6, s4, 6')
        a('s_and_b32 s7, s4, 1')
        a('s_and_b32 s8, s5, 1')
        a('s_add_u32 s4, s6, s8')
        a('s_mul_i32 s7, s7, 14')
        a('s_lshr_b32 s5, s5, 1')
        a('s_add_u32 s5, s7, s5')
    else:
        a('s_and_b32 s4, s2, 7')
        a('s_lshr_b32 s5, s2, 3')
        a('s_sub_u32 s5, s5, 4')
        a('s_lshr_b32 s6, s4, 2')
        a('s_and_b32 s7, s4, 3')
        a('s_lshl_b32 s6, s6, 2')
        a('s_and_b32 s8, s5, 3')
        a('s_add_u32 s4, s6, s8')
        a('s_mul_i32 s7, s7, 7')
        a('s_lshr_b32 s5, s5, 2')
        a('s_add_u32 s5, s7, s5')
    a('v_and_b32 v3, 31, v2')
    a('v_lshl_add_u32 v3, v1, 5, v3')
    a('v_lshrrev_b32 v4, 5, v2')
    a('s_mul_i32 s6, s4, 229376')
    a('v_lshrrev_b32 v5, 3, v2')
    a('v_lshl_add_u32 v5, v1, 5, v5')
    a('v_mul_u32_u24 v5, 896, v5')
    a('v_and_b32 v7, 7, v2')
    a('v_lshrrev_b32 v8, 4, v2')
    a('v_xor_b32 v8, v7, v8')
    a('v_lshl_add_u32 v%d, v8, 4, v5' % VA0)
    a('v_xor_b32 v8, 4, v8')
    a('v_lshl_add_u32 v%d, v8, 4, v5' % VA1)
    a('v_add_u32 v%d, 7168, v%d' % (VA1, VA1))
    a('v_lshrrev_b32 v6, 3, v2')
    a('v_lshl_add_u32 v6, v1, 3, v6')
    a('v_mul_u32_u24 v6, 3584, v6')
    a('v_bfe_u32 v8, v2, 4, 1')
    a('v_lshlrev_b32 v8, 2, v8')
    a('v_xor_b32 v7, v7, v8')
    a('v_lshl_add_u32 v%d, v7, 4, v6' % VD)
    a('s_lshl_b32 s7, s5, 7')
    a('s_lshl_b32 s8, s3, 10')
    a('s_lshl_b32 s11, s3, 12')
    a('s_waitcnt lgkmcnt(0)')
    a.srd(36, 34, 35, XN_BYTES, XN_OFF)
    a.srd(40, 24, 25, 448 * 3584)
    a.srd(44, 26, 27, 448 * 3584)
    a.srd(48, 34, 35, H_BYTES, H_OFF)
    def issue_groups(c):
        sb = (c % NS) * STG
        g = []
        g.append(['s_add_u32 s9, s7, %d' % (c * 229376),
                  's_add_u32 s10, s8, %d' % (sb + BOFF),
                  's_mov_b32 m0, s10',
                  's_add_u32 s10, s10, %d' % UPO,
                  'buffer_load_dwordx4 v%d, s[40:43], s9 offen lds' % VD])
        g.append(['s_mov_b32 m0, s10',
                  's_add_u32 s14, s6, %d' % (c * 128),
                  'buffer_load_dwordx4 v%d, s[44:47], s9 offen lds' % VD])
        for q in range(4):
            g.append(['s_add_u32 s10, s11, %d' % (sb + q * 1024),
                      's_mov_b32 m0, s10',
                      's_add_u32 s14, s14, 14336' if q == 2 else 's_nop 0',
                      'buffer_load_dwordx4 v%d, s[36:39], s14 offen lds' % (VA0 + (q & 1))])
        return g
    for g in issue_groups(0):
        for ln in g: a(ln)
    stamp(a, 1)
    a('v_lshrrev_b32 v8, 4, v2')
    a('v_and_b32 v9, 15, v2')
    a('v_lshrrev_b32 v10, 2, v9')
    a('v_and_b32 v11, 3, v9')
    a('v_lshrrev_b32 v12, 1, v8')
    a('v_lshl_add_u32 v12, v12, 3, v10')
    a('v_lshlrev_b32 v12, 7, v12')
    a('v_and_b32 v13, 1, v11')
    a('v_lshlrev_b32 v13, 1, v13')
    a('v_and_b32 v14, 1, v8')
    a('v_add_u32 v13, v13, v14')
    a('v_lshrrev_b32 v14, 1, v10')
    a('v_lshl_add_u32 v13, v14, 2, v13')
    a('v_lshl_add_u32 v12, v13, 4, v12')
    a('v_lshrrev_b32 v14, 1, v11')
    a('v_lshl_add_u32 v16, v14, 3, v12')
    a('v_xor_b32 v17, 64, v16')
    VB = 24
    for s in range(NS):
        a('v_add_u32 v%d, %d, v16' % (VB + 2 * s, s * STG + BOFF))
        a('v_add_u32 v%d, %d, v17' % (VB + 2 * s + 1, s * STG + BOFF))
    VX = 96
    a('v_bfe_u32 v9, v3, 1, 3')
    for kk in range(4):
        a('v_add_u32 v10, %d, v4' % (2 * kk))
        a('v_xor_b32 v10, v10, v9')
        a('v_lshlrev_b32 v10, 4, v10')
        a('v_lshl_add_u32 v10, v3, 7, v10')
        for s in range(NS):
            a('v_add_u32 v%d, %d, v10' % (VX + 4 * s + kk, s * STG))
    WF = [32, 52]
    ACC = 112
    for i in range(64):
        a('v_mov_b32 v%d, 0' % (ACC + i))
    def rd(s, kk, buf):
        if EXP == 2: return
        if EXP == 4:
            for u in range(5):
                a('ds_read_b128 %s, v%d' % (vr(buf + 4 * u, 4), VX + 4 * s + kk))
            return
        a('ds_read_b128 %s, v%d' % (vr(buf + 16, 4), VX + 4 * s + kk))
        for u in range(4):
            for h in range(2):
                a('ds_read_b64_tr_b16 %s, v%d offset:%d' % (vr(buf + 4 * u + 2 * h, 2), VB + 2 * s + (u & 1), (u >> 1) * UPO + kk * 2048 + h * 512))
    for g in issue_groups(1):
        for ln in g: a(ln)
    a('s_waitcnt vmcnt(6)')
    a('s_barrier')
    rd(0, 0, WF[0])
    for c in range(7):
        s = c % NS
        stamp(a, 2 + c)
        groups = issue_groups(c + 2) if (c + 2 < 7 and EXP != 1) else []
        for kk in range(4):
            cur = WF[kk & 1]
            if kk < 3:
                rd(s, kk + 1, WF[(kk + 1) & 1])
                a('s_waitcnt lgkmcnt(9)')
            else:
                a('s_waitcnt lgkmcnt(0)')
                if c + 1 < 7:
                    a('s_waitcnt vmcnt(%d)' % (6 if c + 2 < 7 else 0))
                    a('s_barrier')
                    rd((c + 1) % NS, 0, WF[0])
            for u in range(4):
                d = ACC + 16 * u
                if EXP != 3:
                    a('v_mfma_f32_32x32x16_bf16 %s, %s, %s, %s' % (vr(d, 16), vr(cur + 4 * u, 4), vr(cur + 16, 4), vr(d, 16)))
                if groups and kk < 3 and u in (0, 2):
                    for ln in groups.pop(0): a(ln)
    a.nop(14)
    stamp(a, 9)
    KKV = -2.0 * 0.7978845608028654 * 1.4426950408889634
    a('v_mov_b32 v40, 0x%x' % f32bits(0.044715 * KKV))
    a('v_mov_b32 v41, 0x%x' % f32bits(0.044715 * KKV))
    a('v_mov_b32 v42, 0x%x' % f32bits(KKV))
    a('v_mov_b32 v43, 0x%x' % f32bits(KKV))
    a('v_mul_u32_u24 v5, %d, v3' % HP)
    a('v_lshl_add_u32 v5, v4, 5, v5')
    a('s_mul_i32 s14, s4, %d' % (256 * HP))
    a('s_add_u32 s14, s14, s7')
    def store(v, hh, reg):
        a('buffer_store_dwordx4 %s, v5, s[48:51], s14 offen offset:%d' % (vr(reg, 4), 64 * v + 16 * hh))
    gelu_epilogue(a, ACC, 32, 64, store)
    stamp(a, 10)
    a('s_waitcnt vmcnt(0)') if STAMPS else None
    stamp(a, 11)
    if os.environ.get('WAVEST'): dump_wave_stamps(a, [0, 1, 2, 9], SWG, 'k1')
    else: dump_stamps(a, 12, SWG, 'k1')
    a.label('L_k1_end')
    a('s_endpgm')
    return a.text(), 256, NS * STG
```

```python
from asmlib import *
from k0 import *

def gen_k0():
    a = Asm()
    PITCH = 928
    SWG = int(os.environ.get('STAMPWG', '100'))
    inv448 = f32bits(1.0 / 448.0)
    a('s_cmp_ge_u32 s2, 256')
    a('s_cbranch_scc1 L_k0_end')
    stamp(a, 0)
    load_ptrs(a)
    a('v_lshrrev_b32 v1, 6, v0')
    if int(os.environ.get('K0MAP', '1')):
        a('s_and_b32 s3, s2, 7')
        a('s_lshl_b32 s3, s3, 3')
        a('s_lshr_b32 s4, s2, 5')
        a('s_add_u32 s3, s3, s4')
        a('s_bfe_u32 s4, s2, 0x20003')
    else:
        a('s_lshr_b32 s3, s2, 2')
        a('s_and_b32 s4, s2, 3')
    a('v_readfirstlane_b32 s6, v1')
    a('s_mov_b32 s7, 0x%x' % inv448)
    a('v_lshrrev_b32 v1, 4, v0')
    a('v_and_b32 v2, 15, v0')
    a('v_mul_u32_u24 v3, 896, v1')
    a('v_lshl_add_u32 v3, v2, 3, v3')
    a('s_mul_i32 s5, s3, 28672')
    a('s_waitcnt lgkmcnt(0)')
    a.srd(36, 16, 17, XN_BYTES)
    a.srd(40, 34, 35, XN_BYTES, XN_OFF)
    for i in range(7):
        a('buffer_load_dwordx2 %s, v3, s[36:39], s5 offen offset:%d' % (vr(8 + 2 * i, 2), 128 * i))
    a('s_cmp_ge_u32 s6, 4')
    a('s_cbranch_scc1 L_k0_bgen')
    WEARLY = int(os.environ.get('WEARLY', '0'))
    if not WEARLY: a('s_waitcnt vmcnt(0)')
    a.srd(52, 18, 19, 2048 * 225 * 2)
    a.srd(56, 20, 21, 2048 * 225 * 2)
    a.srd(60, 34, 35, WT_BYTES, WT_OFF)
    a('s_lshl_b32 s8, s4, 3')
    a('s_lshl_b32 s8, s8, 6')
    a('s_add_u32 s8, s8, s3')
    a('s_mul_i32 s8, s8, 450')
    a('v_lshlrev_b32 v36, 1, v0')
    for e in range(8):
        for pl in range(2):
            a('s_add_u32 s9, s8, %d' % (e * 64 * 450))
            a('buffer_load_ushort v%d, v36, s[%d:%d], s9 offen' % (112 + 8 * pl + e, 52 + 4 * pl, 55 + 4 * pl))
    if WEARLY == 1: a('s_waitcnt vmcnt(16)')
    if PREFETCH:
        a('s_lshl_b32 s9, s2, 12')
        a('v_lshl_add_u32 v37, v0, 4, s9')
        a('s_mov_b32 s9, 0x100000')
        PS = [64, 68, 12]
        for m in range(3):
            a.srd(PS[m], 24 + 2 * m, 25 + 2 * m, 448 * 3584)
        PFL = [int(x) for x in os.environ.get('PFL', '2,0,1').split(',')]
        for m in PFL:
            a('buffer_load_dwordx4 %s, v37, s[%d:%d], 0 offen' % (vr(136 + 4 * m, 4), PS[m], PS[m] + 3))
            a('buffer_load_dwordx4 %s, v37, s[%d:%d], s9 offen' % (vr(148 + 4 * (m & 1), 4), PS[m], PS[m] + 3))
    if WEARLY == 2: a('s_waitcnt vmcnt(22)')
    a('s_branch L_k0_ln')
    a.label('L_k0_bgen')
    CODEPF = int(os.environ.get('CODEPF', '1'))
    TOUCH = int(os.environ.get('TOUCH', '0'))
    if CODEPF:
        NPF = 24 if TOUCH else 16
        a('s_cmp_ge_u32 s2, %d' % NPF)
        a('s_cbranch_scc1 L_k0_nopf')
        if TOUCH:
            a('s_cmp_lt_u32 s2, 16')
            a('s_cbranch_scc1 L_k0_cpf')
            a('v_and_b32 v96, 63, v0')
            a('v_min_u32 v96, 8, v96')
            a('v_lshlrev_b32 v96, 21, v96')
            a('v_mov_b32 v97, s35')
            a('v_add_co_u32 v96, vcc, s34, v96')
            a('v_addc_co_u32 v97, vcc, 0, v97, vcc')
            for i, sp in enumerate((18, 20, 24, 26, 28, 30)):
                a('v_writelane_b32 v96, s%d, %d' % (sp, 16 + i))
                a('v_writelane_b32 v97, s%d, %d' % (sp + 1, 16 + i))
            a('global_load_dword v99, v[96:97], off')
            a('s_branch L_k0_nopf')
            a.label('L_k0_cpf')
        a('s_getpc_b64 s[96:97]')
        a.label('L_k0_pc')
        a('s_mov_b32 s98, k1_kernel-L_k0_pc')
        a('s_mov_b32 s99, L_k3_end-k1_kernel-4')
        a('s_cmp_lt_u32 s2, 8')
        a('s_cselect_b32 s98, k0_kernel-L_k0_pc, s98')
        a('s_cselect_b32 s99, L_k0_end-k0_kernel-4, s99')
        a('s_ashr_i32 s100, s98, 31')
        a('s_add_u32 s96, s96, s98')
        a('s_addc_u32 s97, s97, s100')
        a('v_and_b32 v98, 255, v0')
        a('v_lshlrev_b32 v98, 7, v98')
        a('v_min_u32 v98, s99, v98')
        a('global_load_dword v99, v98, s[96:97]')
        a.label('L_k0_nopf')
    a('v_and_b32 v4, 15, v0')
    a('v_bfe_u32 v5, v0, 6, 2')
    a('v_lshl_add_u32 v4, v5, 4, v4')
    a('s_lshl_b32 s8, s4, 6')
    a('v_add_u32 v4, s8, v4')
    a('v_bfe_u32 v5, v0, 4, 2')
    a('v_lshlrev_b32 v5, 3, v5')
    BF = 100
    CA, SA, CB, SB = 40, 48, 56, 64
    P2, P4, P32 = 72, 74, 76
    def evalcs(dc, ds, t):
        mod448(a, t, t + 1, t + 2)
        a('v_cvt_f32_u32 v%d, v%d' % (t + 2, t + 2))
        a('v_mul_f32 v%d, s7, v%d' % (t + 2, t + 2))
        a('v_cos_f32 v%d, v%d' % (dc, t + 2))
        a('v_sin_f32 v%d, v%d' % (ds, t + 2))
    a('v_mul_u32_u24 v80, v5, v4')
    a('v_add_u32 v83, v80, v4')
    a('v_lshlrev_b32 v86, 1, v4')
    a('v_lshlrev_b32 v89, 2, v4')
    a('v_lshlrev_b32 v92, 5, v4')
    evalcs(CA, SA, 80)
    evalcs(CA + 1, SA + 1, 83)
    evalcs(P2, P2 + 1, 86)
    evalcs(P4, P4 + 1, 89)
    evalcs(P32, P32 + 1, 92)
    a.nop(1)
    def rotblk(Cd, Sd, Cs, Ss, P):
        a('v_pk_mul_f32 %s, %s, %s op_sel:[0,0] op_sel_hi:[1,0]' % (vr(Cd, 2), vr(Cs, 2), vr(P, 2)))
        a('v_pk_mul_f32 %s, %s, %s op_sel:[0,0] op_sel_hi:[1,0]' % (vr(Sd, 2), vr(Ss, 2), vr(P, 2)))
        a('v_pk_fma_f32 %s, %s, %s, %s op_sel:[0,1,0] op_sel_hi:[1,1,1] neg_lo:[1,0,0] neg_hi:[1,0,0]' % (vr(Cd, 2), vr(Ss, 2), vr(P, 2), vr(Cd, 2)))
        a('v_pk_fma_f32 %s, %s, %s, %s op_sel:[0,1,0] op_sel_hi:[1,1,1]' % (vr(Sd, 2), vr(Cs, 2), vr(P, 2), vr(Sd, 2)))
    rotblk(CA + 2, SA + 2, CA, SA, P2)
    rotblk(CA + 4, SA + 4, CA, SA, P4)
    rotblk(CA + 6, SA + 6, CA + 2, SA + 2, P4)
    bufs = [(CA, SA), (CB, SB)]
    for t in range(14):
        C0, S0 = bufs[t & 1]
        C1, S1 = bufs[(t + 1) & 1]
        if t + 1 < 14:
            for q in range(4):
                rotblk(C1 + 2 * q, S1 + 2 * q, C0 + 2 * q, S0 + 2 * q, P32)
        for q in range(4):
            a('v_cvt_pk_bf16_f32 v%d, v%d, v%d' % (BF + 8 * t + q, C0 + 2 * q, C0 + 2 * q + 1))
            a('v_cvt_pk_bf16_f32 v%d, -v%d, -v%d' % (BF + 8 * t + 4 + q, S0 + 2 * q, S0 + 2 * q + 1))
    a('v_and_b32 v36, 15, v0')
    a('v_lshrrev_b32 v37, 2, v36')
    a('v_and_b32 v36, 3, v36')
    a('v_lshl_add_u32 v36, v37, 3, v36')
    a('v_mul_u32_u24 v36, %d, v36' % PITCH)
    a('v_lshl_add_u32 v36, v5, 1, v36')
    a('v_mul_u32_u24 v37, %d, v4' % (2 * ZP))
    a('v_lshl_add_u32 v37, v5, 1, v37')
    a('v_add_u32 v38, %d, v37' % ZP)
    a.srd(44, 34, 35, ZT_WBYTES, ZT_OFF)
    if CODEPF:
        a('s_cmp_lt_u32 s2, %d' % NPF)
        a('s_cbranch_scc1 L_k0_w1')
        a('s_waitcnt vmcnt(0)')
        a.label('L_k0_w1')
        a('s_waitcnt vmcnt(1)')
    else:
        a('s_waitcnt vmcnt(0)')
    a.label('L_k0_ln')
    stamp(a, 3)
    F0 = 40
    for i in range(14):
        a('v_lshlrev_b32 v%d, 16, v%d' % (F0 + 2 * i, 8 + i))
        a('v_and_b32 v%d, 0xffff0000, v%d' % (F0 + 2 * i + 1, 8 + i))
    a('v_pk_add_f32 v[72:73], %s, %s' % (vr(F0, 2), vr(F0 + 4, 2)))
    a('v_pk_add_f32 v[74:75], %s, %s' % (vr(F0 + 2, 2), vr(F0 + 6, 2)))
    for i in range(4, 14):
        acc = 72 + 2 * (i & 1)
        a('v_pk_add_f32 %s, %s, %s' % (vr(acc, 2), vr(acc, 2), vr(F0 + 2 * i, 2)))
    a('v_pk_add_f32 v[72:73], v[72:73], v[74:75]')
    a('v_add_f32 v72, v72, v73')
    def red16(r):
        for ctl in ('quad_perm:[1,0,3,2]', 'quad_perm:[2,3,0,1]', 'row_half_mirror', 'row_mirror'):
            a.nop(2)
            a('v_add_f32_dpp v%d, v%d, v%d %s row_mask:0xf bank_mask:0xf' % (r, r, r, ctl))
    red16(72)
    a('v_mul_f32 v76, s7, v72')
    SUBM = ' op_sel_hi:[1,0] neg_lo:[0,1] neg_hi:[0,1]'
    for i in range(14):
        acc = 72 + 2 * (i & 1)
        t = 80 + 2 * (i & 3)
        a('v_pk_add_f32 %s, %s, v[76:77]%s' % (vr(t, 2), vr(F0 + 2 * i, 2), SUBM))
        if i < 2:
            a('v_pk_mul_f32 %s, %s, %s' % (vr(acc, 2), vr(t, 2), vr(t, 2)))
        else:
            a('v_pk_fma_f32 %s, %s, %s, %s' % (vr(acc, 2), vr(t, 2), vr(t, 2), vr(acc, 2)))
    a('v_pk_add_f32 v[72:73], v[72:73], v[74:75]')
    a('v_add_f32 v72, v72, v73')
    red16(72)
    a('v_mul_f32 v72, s7, v72')
    a('v_cvt_pk_bf16_f32 v74, v76, v72')
    a('v_lshlrev_b32 v76, 16, v74')
    a('v_and_b32 v72, 0xffff0000, v74')
    a('v_add_f32 v72, 0x%x, v72' % f32bits(1e-5))
    a('v_cvt_pk_bf16_f32 v72, v72, v72')
    a('v_lshlrev_b32 v72, 16, v72')
    a('v_sqrt_f32 v72, v72')
    a.nop(1)
    a('v_cvt_pk_bf16_f32 v72, v72, v72')
    a('v_lshlrev_b32 v72, 16, v72')
    a('v_rcp_f32 v78, v72')
    a.nop(1)
    for i in range(14):
        x0 = F0 + 2 * i
        a('v_pk_add_f32 %s, %s, v[76:77]%s' % (vr(x0, 2), vr(x0, 2), SUBM))
        a('v_cvt_pk_bf16_f32 v75, v%d, v%d' % (x0, x0 + 1))
        a('v_lshlrev_b32 v%d, 16, v75' % x0)
        a('v_and_b32 v%d, 0xffff0000, v75' % (x0 + 1))
        a('v_pk_mul_f32 %s, %s, v[78:79] op_sel_hi:[1,0]' % (vr(x0, 2), vr(x0, 2)))
        a('v_cvt_pk_bf16_f32 v%d, v%d, v%d' % (8 + i, x0, x0 + 1))
    a('v_mul_u32_u24 v74, %d, v1' % PITCH)
    a('v_lshl_add_u32 v74, v2, 3, v74')
    for i in range(7):
        a('ds_write_b64 v74, %s offset:%d' % (vr(8 + 2 * i, 2), 128 * i))
    XNE = os.environ.get('XNE')
    def xn_store(lbl, force=False):
        if XNE is not None and lbl == 'b' and not force: return
        a('s_cmp_lg_u32 s4, 0')
        a('s_cbranch_scc1 L_k0_noxn%s' % lbl)
        for i in range(7):
            a('buffer_store_dwordx2 %s, v3, s[40:43], s5 offen offset:%d %s' % (vr(8 + 2 * i, 2), 128 * i, XNE or ''))
        a.label('L_k0_noxn%s' % lbl)
    a('s_waitcnt lgkmcnt(0)')
    stamp(a, 4)
    a('s_barrier')
    a('s_cmp_ge_u32 s6, 4')
    a('s_cbranch_scc1 L_k0_mfma')
    a('s_waitcnt vmcnt(%d)' % (2 * len(PFL) if PREFETCH else 0))
    a('v_cmp_gt_u32 vcc, 225, v0')
    a('s_and_saveexec_b64 s[10:11], vcc')
    a('s_cbranch_execz L_k0_wt_restore')
    a('v_mul_u32_u24 v36, %d, v0' % (2 * ZP))
    for pl in range(2):
        for q in range(4):
            a('v_lshl_or_b32 v%d, v%d, 16, v%d' % (128 + 4 * pl + q, 112 + 8 * pl + 2 * q + 1, 112 + 8 * pl + 2 * q))
    a('s_lshl_b32 s8, s3, 6')
    a('s_lshl_b32 s9, s4, 4')
    a('s_add_u32 s8, s8, s9')
    a('s_add_u32 s9, s8, %d' % ZP)
    a('buffer_store_dwordx4 v[128:131], v36, s[60:63], s8 offen')
    a('buffer_store_dwordx4 v[132:135], v36, s[60:63], s9 offen')
    a.label('L_k0_wt_restore')
    a('s_mov_b64 exec, s[10:11]')
    xn_store('a')
    stamp(a, 5)
    if os.environ.get('WAVEST0'): dump_wave_stamps(a, [0, 3, 4, 5], SWG, 'k0a')
    a('s_endpgm')
    a.label('L_k0_mfma')
    ACC = 80
    a('s_lshl_b32 s6, s3, 6')
    AF = [40, 48, 56]
    def rd(t):
        buf = AF[t % 3]
        a('ds_read_b128 %s, v36 offset:%d' % (vr(buf, 4), 64 * t))
        a('ds_read_b128 %s, v36 offset:%d' % (vr(buf + 4, 4), 64 * t + 4 * PITCH))
    rd(0)
    rd(1)
    if XNE is not None: xn_store('b', True)
    for t in range(14):
        cur = AF[t % 3]
        if t + 2 < 14:
            rd(t + 2)
            a('s_waitcnt lgkmcnt(4)')
        elif t + 1 < 14:
            a('s_waitcnt lgkmcnt(2)')
        else:
            a('s_waitcnt lgkmcnt(0)')
        for mt in range(2):
            for c in range(2):
                d = ACC + 8 * mt + 4 * c
                a('v_mfma_f32_16x16x32_bf16 %s, %s, %s, %s' % (vr(d, 4), vr(cur + 4 * mt, 4), vr(BF + 8 * t + 4 * c, 4), '0' if t == 0 else vr(d, 4)))
    a.nop(10)
    for c in range(2):
        o = 64 + 4 * c
        for mt in range(2):
            d = ACC + 8 * mt + 4 * c
            a('v_cvt_pk_bf16_f32 v%d, v%d, v%d' % (o + 2 * mt, d, d + 1))
            a('v_cvt_pk_bf16_f32 v%d, v%d, v%d' % (o + 2 * mt + 1, d + 2, d + 3))
        a('buffer_store_dwordx4 %s, v%d, s[44:47], s6 offen' % (vr(o, 4), 37 + c))
    xn_store('b')
    a('s_waitcnt vmcnt(0)') if STAMPS else None
    stamp(a, 5)
    if os.environ.get('WAVEST0'): dump_wave_stamps(a, [0, 3, 4, 5], SWG, 'k0b')
    if os.environ.get('ALLWG'):
        a('v_cmp_eq_u32 vcc, 256, v0')
        a('s_and_saveexec_b64 s[62:63], vcc')
        a.srd(40, 34, 35, 1 << 20, 32 << 20)
        a('s_lshl_b32 s8, s2, 5')
        a('v_mov_b32 v1, s8')
        for k, i in enumerate([0, 3, 4, 5]):
            a('v_mov_b32 v2, s%d' % (74 + 2 * i))
            a('v_mov_b32 v3, s%d' % (75 + 2 * i))
            a('buffer_store_dwordx2 v[2:3], v1, s[40:43], 0 offen offset:%d' % (8 * k))
            a.nop(2)
    a.label('L_k0_end')
    a('s_endpgm')
    return a.text(), 212, 32 * PITCH
```
